```python
import torch

def _softmax(x, axis=-1):
    return torch.softmax(x, dim=axis)

def _gelu(x):
    return torch.nn.functional.gelu(x, approximate='tanh')

def _silu(x):
    return torch.nn.functional.silu(x)

def _sigmoid(x):
    return torch.sigmoid(x)

def _layernorm(x, axis=-1, eps=1e-05):
    m = x.mean(dim=axis, keepdim=True)
    v = x.var(dim=axis, keepdim=True, unbiased=False)
    return (x - m) / torch.sqrt(v + eps)

def _scatter_add(tgt, idx, src, axis=0):
    return tgt.clone().index_add_(axis, idx, src)

def _segment_sum(src, seg, n):
    out = torch.zeros((n,) + src.shape[1:], dtype=src.dtype)
    return out.index_add_(0, seg, src)

def _pad(x, pw):
    flat = tuple((v for pair in reversed(pw) for v in pair))
    return torch.nn.functional.pad(x, flat)
kernel_name = 'recurrent_scan__memory_aug_recurrent_mem_tr__swiglu_ffn__prompt'

def setup_inputs():

    _w = lambda a: (lambda t: t.to(torch.bfloat16) if t.is_floating_point() else t)(torch.as_tensor(a))

    def _A_setup():
        B, S, Dm = (1, 2048, 448)
        H, Dh = (16, 256)
        M, seg = (8, 32)
        seg = min(seg, S)
        S = S // seg * seg
        return {'x': _w((lambda *s: torch.randn(*s, dtype=torch.bfloat16) * 0.05)(B, S, Dm)), 'mem0': _w((lambda *s: torch.randn(*s, dtype=torch.bfloat16) * 0.2)(B, M, Dm)), 'Wq': _w((lambda *s: torch.randn(*s, dtype=torch.bfloat16) * 1.6)(Dm, H, Dh) * Dm ** (-0.5)), 'Wk': _w((lambda *s: torch.randn(*s, dtype=torch.bfloat16) * 1.6)(Dm, H, Dh) * Dm ** (-0.5)), 'Wv': _w((lambda *s: torch.randn(*s, dtype=torch.bfloat16) * 0.2)(Dm, H, Dh) * Dm ** (-0.5)), 'Wo': _w((lambda *s: torch.randn(*s, dtype=torch.bfloat16) * 0.2)(H, Dh, Dm) * (H * Dh) ** (-0.5)), 'seg_len': seg}
    _A_in = _A_setup()

    def _B_setup():
        B, S, D, F = (1, 2048, 448, 1792)
        return {'x': _w((lambda *s: torch.randn(*s, dtype=torch.bfloat16) * 0.05)(B, S, D)), 'w_gate': _w((lambda *s: torch.randn(*s, dtype=torch.bfloat16) * 0.1)(D, F)), 'w_up': _w((lambda *s: torch.randn(*s, dtype=torch.bfloat16) * 0.1)(D, F)), 'w_down': _w((lambda *s: torch.randn(*s, dtype=torch.bfloat16) * 0.1)(F, D))}
    _B_in = _B_setup()
    return {'A_x': _A_in['x'], 'A_mem0': _A_in['mem0'], 'A_Wq': _A_in['Wq'], 'A_Wk': _A_in['Wk'], 'A_Wv': _A_in['Wv'], 'A_Wo': _A_in['Wo'], 'A_seg_len': _A_in['seg_len'], 'B_x': _B_in['x'], 'B_w_gate': _B_in['w_gate'], 'B_w_up': _B_in['w_up'], 'B_w_down': _B_in['w_down']}

def reference(A_x, A_mem0, A_Wq, A_Wk, A_Wv, A_Wo, A_seg_len, B_x, B_w_gate, B_w_up, B_w_down):

    def _A_ref(x, mem0, Wq, Wk, Wv, Wo, seg_len):
        B, S, Dm = x.shape
        H, Dh = (Wq.shape[1], Wq.shape[2])
        M = mem0.shape[1]
        scale = Dh ** (-0.5)
        n_seg = S // seg_len
        L = M + seg_len
        idx = torch.arange(L)
        mask = (idx[:, None] < M) | (idx[:, None] >= idx[None, :])
        mem = mem0
        outs = []
        for s in range(n_seg):
            xs = x[:, s * seg_len:(s + 1) * seg_len, :].clone()
            h = torch.concatenate([mem, xs], axis=1)
            q = torch.einsum('btd,dhe->bhte', h, Wq)
            k = torch.einsum('btd,dhe->bhte', h, Wk)
            v = torch.einsum('btd,dhe->bhte', h, Wv)
            scores = torch.einsum('bhqe,bhke->bhqk', q, k) * scale
            scores = torch.where(mask[None, None], scores, -1000000000.0)
            p = _softmax(scores, axis=-1)
            o = torch.einsum('bhqk,bhke->bhqe', p, v)
            o = torch.einsum('bhte,hed->btd', o, Wo)
            mem = o[:, :M, :].clone()
            outs.append(o[:, M:, :])
        return torch.concatenate(outs, axis=1)

    def _B_ref(x, w_gate, w_up, w_down):
        g = _silu(x @ w_gate)
        u = x @ w_up
        return g * u @ w_down
    x = A_x
    xn = _layernorm(x, axis=-1)
    s = _A_ref(xn, A_mem0, A_Wq, A_Wk, A_Wv, A_Wo, A_seg_len)
    g = _silu(_B_ref(xn, B_w_gate, B_w_up, B_w_down))
    return x + s * g
```

```python
class Asm:
    def __init__(self):
        self.L = []
        self.n = 0
    def __call__(self, s=""):
        for line in s.split("\n"):
            self.L.append(line)
    def lab(self, p="L"):
        self.n += 1
        return f"{p}_{self.n}"
    def text(self):
        return "\n".join(self.L) + "\n"

HDR = """; Kernarg: 14 ptrs
"""
def kernel_begin(a, name):
    a(f".globl {name}\n.p2align 8\n.type {name},@function\n{name}:")
def kernel_desc(a, name, vgpr, sgpr=102, accum=None, idy=False):
    if accum is None: accum = min(256, (vgpr + 3)//4*4)
    a(f""".section .rodata,"a"
.p2align 6
.amdhsa_kernel {name}
  .amdhsa_next_free_vgpr {vgpr}
  .amdhsa_next_free_sgpr {sgpr}
  .amdhsa_accum_offset {accum}
  .amdhsa_group_segment_fixed_size 0
  .amdhsa_kernarg_size 112
  .amdhsa_user_sgpr_count 2
  .amdhsa_user_sgpr_kernarg_segment_ptr 1
  .amdhsa_system_sgpr_workgroup_id_x 1
  .amdhsa_float_denorm_mode_32 3
.end_amdhsa_kernel
.text""")
def srd(a, d, base, nbytes):
    a(f"s_mov_b32 s{d}, s{base}\ns_and_b32 s{d+1}, s{base+1}, 0xffff\ns_mov_b32 s{d+2}, {nbytes}\ns_mov_b32 s{d+3}, 0x00020000")
```

```python
from asmlib import *
from layout import *
WS = "s[8:11]"
OOB = 0x40000000
VCNT, HCNT, QUEUE, PROG = CNT, CNT + 0x800, CNT + 0x1000, CNT + 0x1080
def vr(b, n): return f"v[{b}:{b+n-1}]"
def ar(b, n): return f"a[{b}:{b+n-1}]"
sW, sBUD, sID, sTT, sH, sSEG, sSRC, sM0, sT0, sT1, sT2, sXF, sLOOP = 17, 19, 20, 21, 22, 23, 24, 25, 26, 27, 28, 29, 30
SRDG, SRDU, SRDD, SRDW = 40, 44, 48, 52
vLane, vL16, vSrc0, vSrc1, vRd, vT, vZ = 1, 2, 3, 4, 5, 24, 25
WF, XF = 64, 128
LA = 8
NEGL2E = 0xBFB8AA3B

def bulk_setup(a):
    a(f"""v_lshrrev_b32 v1, 6, v0
s_nop 0
v_readfirstlane_b32 s{sW}, v1
v_and_b32 v{vLane}, 63, v0
v_lshlrev_b32 v{vL16}, 4, v{vLane}
v_mov_b32 v{vZ}, 0
s_mov_b32 s{sBUD}, 0x400000
s_load_dwordx4 s[56:59], s[0:1], 64
s_load_dwordx2 s[60:61], s[0:1], 80
s_waitcnt lgkmcnt(0)""")
    srd(a, SRDG, 56, 448*3584); srd(a, SRDU, 58, 448*3584); srd(a, SRDD, 60, 1792*896)

def addr_can(a, RS, swap):
    a(f"""v_bfe_u32 v26, v{vLane}, 4, 1
s_mov_b32 s{sT0}, {RS}
v_mul_lo_u32 v26, v26, s{sT0}
v_lshrrev_b32 v27, 5, v{vLane}
v_lshl_add_u32 v26, v27, 8, v26
v_and_b32 v27, 15, v{vLane}""")
    if swap:
        a(f"""v_and_b32 v28, 9, v27
v_bfe_u32 v29, v27, 1, 1
v_lshl_add_u32 v28, v29, 2, v28
v_bfe_u32 v29, v27, 2, 1
v_lshl_add_u32 v27, v29, 1, v28""")
    a(f"v_lshl_add_u32 v{vSrc0}, v27, 4, v26")
    for b in range(4): a(f"v_add_u32 v{vRd+b}, {b*28672}, v{vL16}")
    a(f"s_mul_i32 s{sM0}, s{sW}, 7168")

def addr_tr(a, rowstride):
    a(f"""v_lshrrev_b32 v26, 5, v{vLane}
v_bfe_u32 v27, v{vLane}, 2, 3
v_xor_b32 v27, v27, v26
v_and_b32 v28, 3, v{vLane}
v_mul_u32_u24 v29, {rowstride}, v26
v_lshl_add_u32 v29, v28, 4, v29
v_mov_b32 v30, {OOB}
v_lshl_add_u32 v{vSrc0}, v27, 6, v29
v_cmp_gt_u32 vcc, 7, v27
v_xor_b32 v27, 2, v27
v_lshl_add_u32 v{vSrc1}, v27, 6, v29
v_cndmask_b32 v{vSrc0}, v30, v{vSrc0}, vcc
v_cmp_gt_u32 vcc, 7, v27
s_nop 1
v_cndmask_b32 v{vSrc1}, v30, v{vSrc1}, vcc
v_bfe_u32 v26, v{vLane}, 2, 2
v_lshrrev_b32 v27, 5, v{vLane}
v_lshl_add_u32 v27, v27, 3, v26
v_lshlrev_b32 v27, 9, v27
v_bfe_u32 v28, v{vLane}, 4, 1
v_lshl_add_u32 v27, v28, 5, v27
v_and_b32 v28, 1, v{vLane}
v_lshl_add_u32 v27, v28, 4, v27
v_bfe_u32 v28, v{vLane}, 1, 1
v_lshl_add_u32 v27, v28, 3, v27""")
    for t in range(7):
        a(f"v_xor_b32 v28, {t}, v26\nv_lshl_add_u32 v{vRd+t}, v28, 6, v27\nv_add_u32 v{vRd+7+t}, 0x10000, v{vRd+t}")
    a(f"s_lshl_b32 s{sM0}, s{sW}, 13")

def engine(a, kind):
    tr = kind in ("F1", "F2")
    NT = 7 if kind == "F2" else 14
    KS = 4 if kind == "F2" else 2
    ND = 8 if tr else 7
    BUF = 32768 if tr else 28672
    RS = {"V": 16*TILE_B, "S": TILE_B}.get(kind)
    rowstride = {"F1": 3584, "F2": 896}.get(kind)
    sadv = {"V": 1024, "S": 1024, "F1": 32*3584, "F2": 64*896}[kind]
    srdw = WS if not tr else f"s[{SRDW}:{SRDW+3}]"
    NST = 14 if kind != "F2" else 4
    XR = 28 if kind != "F2" else 16
    def dma(stage):
        out = []
        for i in range(ND):
            off = i*2*rowstride if tr else i*2*RS
            src = (vSrc1 if (tr and (i & 1)) else vSrc0)
            out.append(f"s_add_u32 m0, s{sM0}, {(stage % 4)*BUF + i*1024}\ns_add_u32 s{sT0}, s{sSRC}, {off}")
            out.append(f"buffer_load_dwordx4 v{src}, {srdw}, s{sT0} offen lds")
        out.append(f"s_add_u32 s{sSRC}, s{sSRC}, {sadv}")
        return out
    def xld(kk):
        return f"buffer_load_dwordx4 {vr(XF+4*(kk % XR),4)}, v{vL16}, {WS}, s{sXF} offen offset:{(kk & 3)*1024} sc1"
    def rd(n):
        st_, rem = divmod(n, 28); k2, p = divmod(rem, NT)
        b = WF + 4*(n % 16)
        if not tr:
            return [f"ds_read_b128 {vr(b,4)}, v{vRd + st_ % 4} offset:{rem*1024}"]
        bb = st_ % 4
        if kind == "F1": unit, off = p % 7, k2*16384 + (p // 7)*8192
        else: unit, off = p, k2*8192
        va = vRd + unit + (7 if bb >= 2 else 0); off += (bb & 1)*32768
        return [f"ds_read_b64_tr_b16 {vr(b,2)}, v{va} offset:{off}", f"ds_read_b64_tr_b16 {vr(b+2,2)}, v{va} offset:{off+2048}"]
    per = ND + (4 if kind == "F2" else 0)
    for x in dma(0): a(x)
    if kind != "F2":
        for kk in range(28):
            if kk and kk % 4 == 0: a(f"s_add_u32 s{sXF}, s{sXF}, 4096")
            a(f"buffer_load_dwordx4 {vr(XF+4*kk,4)}, v{vL16}, {WS}, s{sXF} offen offset:{(kk & 3)*1024}")
        for s_ in (1, 2):
            for x in dma(s_): a(x)
    else:
        for kk in range(4): a(xld(kk))
        a(f"s_add_u32 s{sXF}, s{sXF}, 4096")
        for s_ in (1, 2):
            for x in dma(s_): a(x)
            for kk in range(4): a(xld(4*s_ + kk))
            a(f"s_add_u32 s{sXF}, s{sXF}, 4096")
        for r in range(112): a(f"v_accvgpr_write_b32 a{r}, 0")
    a(f"s_waitcnt vmcnt({2*per})\ns_barrier")
    for n in range(LA):
        for x in rd(n): a(x)
    Lloop = a.lab("Lf2")
    if kind == "F2": a(f"s_mov_b32 s{sLOOP}, 7\n{Lloop}:")
    N = NST*28
    fill = []
    for n in range(N):
        st_, rem = divmod(n, 28); k2, p = divmod(rem, NT)
        kk = st_*KS + k2
        last = kind != "F2" and n + LA >= N
        cnt = min(LA - 1, N - 1 - n) if kind != "F2" else LA - 1
        a(f"s_waitcnt lgkmcnt({cnt*(2 if tr else 1)})")
        w_, x_ = vr(WF + 4*(n % 16), 4), vr(XF + 4*(kk % XR), 4)
        A_, B_ = (x_, w_) if kind == "V" else (w_, x_)
        C_ = "0" if (kk == 0 and kind != "F2") else ar(16*p, 16)
        a(f"v_mfma_f32_32x32x16_bf16 {ar(16*p,16)}, {A_}, {B_}, {C_}")
        if rem == 28 - LA - 1 and (kind == "F2" or st_ + 1 < NST):
            more = kind == "F2" or st_ + 2 < NST
            a(f"s_waitcnt vmcnt({per if more else 0})\ns_barrier")
            if kind == "F2" or st_ + 3 < NST:
                fill = dma(st_ + 3)
                if kind == "F2": pend_x = [xld(4*(st_+3) + j) for j in range(4)] + [f"s_add_u32 s{sXF}, s{sXF}, 4096"]
        if not last:
            for x in rd((n + LA) % (N if kind == "F2" else 10**9)): a(x)
        if kind == "F2" and rem == 27:
            fill = fill + pend_x
        for _ in range(1 if tr else 2):
            if fill: a(fill.pop(0))
    if kind == "F2":
        for x in fill: a(x)
        a(f"s_sub_u32 s{sLOOP}, s{sLOOP}, 1\ns_cmp_lg_u32 s{sLOOP}, 0\ns_cbranch_scc1 {Lloop}\ns_waitcnt vmcnt(0) lgkmcnt(0)")
    assert kind == "F2" or not fill
    a("s_nop 15")

def signal(a, cntbase):
    L = a.lab("Lsig")
    a(f"""s_waitcnt vmcnt(0)
s_barrier
s_cmp_lg_u32 s{sW}, 0
s_cbranch_scc1 {L}
s_lshl_b32 s{sT0}, s{sTT}, 7
s_add_u32 s{sT0}, s{sT0}, {cntbase}
v_mov_b32 v26, 1
v_mov_b32 v27, {OOB}
v_cmp_eq_u32 vcc, 0, v{vLane}
s_nop 1
v_cndmask_b32 v27, v27, v{vZ}, vcc
buffer_atomic_add v26, v27, {WS}, s{sT0} offen
{L}:""")

def rd_acc(a, dst, src, n):
    for i in range(n): a(f"v_accvgpr_read_b32 v{dst+i}, a{src+i}")

def item_V(a):
    addr_can(a, 16*TILE_B, False)
    a(f"""s_and_b32 s{sT0}, s{sW}, 1
s_mul_i32 s{sSRC}, s{sT0}, {7*32*TILE_B}
s_lshr_b32 s{sT0}, s{sW}, 1
s_lshl_b32 s{sT0}, s{sT0}, 9
s_add_u32 s{sSRC}, s{sSRC}, s{sT0}
s_mul_i32 s{sT0}, s{sH}, {TILE_B}
s_add_u32 s{sSRC}, s{sSRC}, s{sT0}
s_add_u32 s{sSRC}, s{sSRC}, {BCAN}
s_mul_i32 s{sXF}, s{sSEG}, 28672
s_add_u32 s{sXF}, s{sXF}, {XNAT}""")
    engine(a, "V")
    a(f"""v_bfe_u32 v26, v{vLane}, 4, 1
v_lshlrev_b32 v26, 14, v26
v_lshrrev_b32 v27, 5, v{vLane}
v_lshl_add_u32 v26, v27, 8, v26
v_and_b32 v27, 15, v{vLane}
v_lshl_add_u32 v26, v27, 4, v26
s_mul_i32 s{sT0}, s{sSEG}, {28*16384}
s_lshl_b32 s{sT1}, s{sH}, 10
s_add_u32 s{sT0}, s{sT0}, s{sT1}
s_add_u32 s{sT0}, s{sT0}, {VOOP}""")
    for p in range(14):
        b = 32 + 16*(p & 1)
        rd_acc(a, b, 16*p, 16)
        for r in range(8): a(f"v_cvt_pk_bf16_f32 v{b+r}, v{b+2*r}, v{b+2*r+1}")
        a(f"buffer_store_dwordx4 {vr(b,4)}, v26, {WS}, s{sT0} offen sc1")
        a(f"buffer_store_dwordx4 {vr(b+4,4)}, v26, {WS}, s{sT0} offen offset:512 sc1")
        a(f"s_add_u32 s{sT0}, s{sT0}, 32768")
    signal(a, VCNT)

def silu_inplace(a, b, n, tmp):
    for i in range(n): a(f"v_mul_f32 v{tmp+i}, s{sT2}, v{b+i}")
    for i in range(n): a(f"v_exp_f32 v{tmp+i}, v{tmp+i}")
    for i in range(n): a(f"v_add_f32 v{tmp+i}, 1.0, v{tmp+i}")
    for i in range(n): a(f"v_rcp_f32 v{tmp+i}, v{tmp+i}")
    for i in range(n): a(f"v_mul_f32 v{b+i}, v{b+i}, v{tmp+i}")

def item_F1(a):
    addr_tr(a, 3584)
    a(f"""s_and_b32 s{sT0}, s{sW}, 1
s_cmp_eq_u32 s{sT0}, 0
s_cselect_b32 s{SRDW}, s{SRDG}, s{SRDU}
s_cselect_b32 s{SRDW+1}, s{SRDG+1}, s{SRDU+1}
s_mov_b32 s{SRDW+2}, {448*3584}
s_mov_b32 s{SRDW+3}, 0x00020000
s_lshr_b32 s{sT0}, s{sW}, 1
s_mul_i32 s{sSRC}, s{sT0}, {16*3584}
s_mul_i32 s{sT0}, s{sH}, 448
s_add_u32 s{sSRC}, s{sSRC}, s{sT0}
s_mul_i32 s{sXF}, s{sSEG}, 28672
s_add_u32 s{sXF}, s{sXF}, {XNAT}""")
    engine(a, "F1")
    a(f"""s_mul_i32 s{sT0}, s{sSEG}, {112*1024}
s_mul_i32 s{sT1}, s{sH}, 14336
s_add_u32 s{sT0}, s{sT0}, s{sT1}
s_add_u32 s{sT0}, s{sT0}, {HF}
s_mov_b32 s{sT2}, {NEGL2E}""")
    for t in range(7):
        b = 64 + 32*(t & 1)
        rd_acc(a, b, 16*t, 16); rd_acc(a, b+16, 16*(7+t), 16)
        silu_inplace(a, b, 16, 32)
        for i in range(16): a(f"v_mul_f32 v{b+i}, v{b+i}, v{b+16+i}")
        for r in range(8): a(f"v_cvt_pk_bf16_f32 v{b+r}, v{b+2*r}, v{b+2*r+1}")
        a(f"buffer_store_dwordx4 {vr(b,4)}, v{vL16}, {WS}, s{sT0} offen sc1")
        a(f"buffer_store_dwordx4 {vr(b+4,4)}, v{vL16}, {WS}, s{sT0} offen offset:1024 sc1")
        a(f"s_add_u32 s{sT0}, s{sT0}, 2048")
    signal(a, HCNT)

def wait_cnt(a, soff, target, sleep):
    L, Lo = a.lab("Lwc"), a.lab("Lwo")
    a(f"""{L}:
buffer_load_dword v26, v{vZ}, {WS}, s{soff} offen sc1
s_waitcnt vmcnt(0)
v_cmp_gt_u32 vcc, {target}, v26
s_cbranch_vccz {Lo}
s_sleep {sleep}
s_sub_u32 s{sBUD}, s{sBUD}, 1
s_cbranch_scc0 {L}
s_mov_b32 s{sBUD}, 0
{Lo}:""")

def item_F2(a):
    addr_tr(a, 896)
    a(f"""s_mov_b32 s{SRDW}, s{SRDD}
s_mov_b32 s{SRDW+1}, s{SRDD+1}
s_mov_b32 s{SRDW+2}, {1792*896}
s_mov_b32 s{SRDW+3}, 0x00020000
s_mul_i32 s{sSRC}, s{sW}, {16*896}
s_mul_i32 s{sT0}, s{sH}, 448
s_add_u32 s{sSRC}, s{sSRC}, s{sT0}
s_mul_i32 s{sXF}, s{sSEG}, {112*1024}
s_add_u32 s{sXF}, s{sXF}, {HF}
s_lshl_b32 s{sT1}, s{sTT}, 7
s_add_u32 s{sT1}, s{sT1}, {HCNT}""")
    wait_cnt(a, sT1, 8, 8)
    engine(a, "F2")
    a(f"""v_and_b32 v26, 31, v{vLane}
v_mul_u32_u24 v26, 896, v26
v_lshrrev_b32 v27, 5, v{vLane}
v_lshl_add_u32 v26, v27, 4, v26
s_mul_i32 s{sT0}, s{sSEG}, 28672
s_mul_i32 s{sT1}, s{sH}, 448
s_add_u32 s{sT0}, s{sT0}, s{sT1}
s_add_u32 s{sT0}, s{sT0}, {GB}
s_mov_b32 s{sT2}, {NEGL2E}""")
    for t in range(7):
        b = 64 + 16*(t & 1)
        rd_acc(a, b, 16*t, 16)
        silu_inplace(a, b, 16, 32)
        for r in range(8): a(f"v_cvt_pk_bf16_f32 v{b+r}, v{b+2*r}, v{b+2*r+1}")
        a(f"buffer_store_dwordx4 {vr(b,4)}, v26, {WS}, s{sT0} offen offset:{64*t}")
        a(f"buffer_store_dwordx4 {vr(b+4,4)}, v26, {WS}, s{sT0} offen offset:{64*t+32}")
    a("s_barrier")

def item_S(a):
    addr_can(a, TILE_B, True)
    a(f"""s_and_b32 s{sT0}, s{sW}, 1
s_mul_i32 s{sSRC}, s{sT0}, {14*TILE_B}
s_lshr_b32 s{sT0}, s{sW}, 1
s_lshl_b32 s{sT0}, s{sT0}, 9
s_add_u32 s{sSRC}, s{sSRC}, s{sT0}
s_mul_i32 s{sT0}, s{sH}, {28*TILE_B}
s_add_u32 s{sSRC}, s{sSRC}, s{sT0}
s_add_u32 s{sSRC}, s{sSRC}, {ACAN}
s_mul_i32 s{sXF}, s{sSEG}, 28672
s_add_u32 s{sXF}, s{sXF}, {XNAT}""")
    engine(a, "S")
    for p in range(14):
        rd_acc(a, 32, 16*p, 16)
        for r in range(8): a(f"v_cvt_pk_bf16_f32 v{XF+8*p+r}, v{32+2*r}, v{33+2*r}")
    a(f"""v_bfe_u32 v26, v{vLane}, 4, 1
v_mul_u32_u24 v26, 14336, v26
v_lshrrev_b32 v27, 5, v{vLane}
v_lshl_add_u32 v26, v27, 8, v26
v_and_b32 v28, 15, v{vLane}
v_lshl_add_u32 v26, v28, 4, v26
s_mul_i32 s{sT0}, s{sSEG}, 28672
s_add_u32 s{sT0}, s{sT0}, {XREC}
v_bfe_u32 v28, v{vLane}, 1, 2
v_lshlrev_b32 v28, 6, v28
v_lshl_add_u32 v28, v27, 5, v28
v_and_b32 v29, 1, v{vLane}
v_lshl_add_u32 v28, v29, 4, v28
v_and_b32 v29, 31, v{vLane}
v_lshlrev_b32 v27, 2, v27
v_sub_u32 v29, v29, v27""")
    for kk in range(28):
        if kk and kk % 8 == 0: a(f"s_add_u32 s{sT0}, s{sT0}, 4096")
        a(f"buffer_load_dwordx4 {ar(4*kk,4)}, v26, {WS}, s{sT0} offen offset:{(kk & 7)*512}")
    for kk in range(28):
        a(f"s_waitcnt vmcnt({27-kk})")
        a(f"v_mfma_f32_32x32x16_bf16 v[64:79], {ar(4*kk,4)}, {vr(XF+4*kk,4)}, {'0' if kk == 0 else 'v[64:79]'}")
    Lp, Lgo, Lm, Lok, Lnear = (a.lab(x) for x in ("Lsp", "Lsg", "Lsm", "Lso", "Lsn"))
    a(f"""s_mov_b32 s{sT1}, {PROG}
{Lp}:
buffer_load_dword v30, v{vZ}, {WS}, s{sT1} offen sc1
s_waitcnt vmcnt(0)
v_readfirstlane_b32 s{sT2}, v30
s_cmp_gt_u32 s{sT2}, s{sSEG}
s_cbranch_scc1 {Lgo}
s_sub_u32 s{sBUD}, s{sBUD}, 1
s_cbranch_scc1 {Lnear}
s_sleep 4
s_add_u32 s{sT2}, s{sT2}, 1
s_cmp_gt_u32 s{sT2}, s{sSEG}
s_cbranch_scc1 {Lp}
s_sleep 32
s_add_u32 s{sT2}, s{sT2}, 3
s_cmp_gt_u32 s{sT2}, s{sSEG}
s_cbranch_scc1 {Lp}
s_sleep 96
s_branch {Lp}
{Lnear}:
s_mov_b32 s{sBUD}, 0
{Lgo}:
s_lshl_b32 s{sT0}, s{sSEG}, 13
s_add_u32 s{sT0}, s{sT0}, {MEMALL}
s_add_u32 s{sT1}, s{sT0}, 4096
{Lm}:""")
    for kk in range(28):
        so = sT0 if kk < 16 else sT1
        a(f"buffer_load_dwordx4 {ar(112+4*kk,4)}, v28, {WS}, s{so} offen offset:{(kk & 15)*256} sc1")
    for kk in range(28):
        a(f"s_waitcnt vmcnt({27-kk})")
        a(f"v_mfma_f32_32x32x16_bf16 v[80:95], {ar(112+4*kk,4)}, {vr(XF+4*kk,4)}, {'0' if kk == 0 else 'v[80:95]'}")
    a(f"""s_nop 15
v_cmp_u_f32 vcc, v80, v81
v_cmp_u_f32 s[62:63], v82, v83
s_or_b64 vcc, vcc, s[62:63]
s_cbranch_vccz {Lok}
s_sleep 2
s_sub_u32 s{sBUD}, s{sBUD}, 1
s_cbranch_scc0 {Lm}
s_mov_b32 s{sBUD}, 0
{Lok}:
v_mov_b32 v31, 0xff800000""")
    for r in range(16):
        key = 8*(r >> 2) + (r & 3)
        a(f"v_cmp_le_i32 vcc, {key}, v29\ns_nop 1\nv_cndmask_b32 v{64+r}, v31, v{64+r}, vcc")
    a("v_max3_f32 v32, v64, v65, v66")
    for r in range(67, 83, 2): a(f"v_max3_f32 v32, v32, v{r}, v{r+1}")
    a("""v_max_f32 v32, v32, v83
v_mov_b32 v33, v32
s_nop 1
v_permlane32_swap_b32 v33, v32
v_max_f32 v32, v32, v33""")
    for r in range(20): a(f"v_sub_f32 v{64+r}, v{64+r}, v32")
    for r in range(20): a(f"v_exp_f32 v{64+r}, v{64+r}")
    a("v_add_f32 v32, v64, v65")
    for r in range(2, 20): a(f"v_add_f32 v32, v32, v{64+r}")
    a("""v_mov_b32 v33, v32
s_nop 1
v_permlane32_swap_b32 v33, v32
v_add_f32 v32, v32, v33
v_rcp_f32 v32, v32
s_nop 0""")
    for r in range(20): a(f"v_mul_f32 v{64+r}, v{64+r}, v32")
    for r in range(10): a(f"v_cvt_pk_bf16_f32 v{64+r}, v{64+2*r}, v{65+2*r}")
    a(f"""v_bfe_u32 v26, v{vLane}, 4, 1
v_lshrrev_b32 v27, 5, v{vLane}
v_and_b32 v28, 15, v{vLane}
v_lshlrev_b32 v30, 14, v26
v_lshl_add_u32 v30, v27, 8, v30
v_lshl_add_u32 v30, v28, 4, v30
s_lshl_b32 s{sT0}, s{sSEG}, 15
s_lshl_b32 s{sT1}, s{sH}, 10
s_add_u32 s{sT0}, s{sT0}, s{sT1}
s_add_u32 s{sT0}, s{sT0}, {PX}
buffer_store_dwordx4 v[64:67], v30, {WS}, s{sT0} offen
buffer_store_dwordx4 v[68:71], v30, {WS}, s{sT0} offen offset:512
v_lshlrev_b32 v30, 12, v26
v_lshl_add_u32 v30, v27, 9, v30
v_lshl_add_u32 v30, v28, 4, v30
s_lshl_b32 s{sT0}, s{sSEG}, 13
s_lshr_b32 s{sT1}, s{sH}, 2
s_lshl_b32 s{sT1}, s{sT1}, 10
s_add_u32 s{sT0}, s{sT0}, s{sT1}
s_and_b32 s{sT1}, s{sH}, 3
s_lshl_b32 s{sT1}, s{sT1}, 2
s_add_u32 s{sT0}, s{sT0}, s{sT1}
s_add_u32 s{sT0}, s{sT0}, {PM}
buffer_store_dword v72, v30, {WS}, s{sT0} offen
buffer_store_dword v73, v30, {WS}, s{sT0} offen offset:256
s_barrier""")

LQ = 131072
def dispatcher(a, Lexit, hook=None):
    Ln, LV, LF1, LF2, LS, Lsk = (a.lab(x) for x in ("Lnext", "LiV", "LiF1", "LiF2", "LiS", "Lq"))
    a(f"""{Ln}:
s_cmp_lg_u32 s{sW}, 0
s_cbranch_scc1 {Lsk}
v_mov_b32 v26, 1
v_mov_b32 v27, {OOB}
v_cmp_eq_u32 vcc, 0, v{vLane}
s_mov_b32 s{sT0}, {QUEUE}
v_cndmask_b32 v27, v27, v{vZ}, vcc
buffer_atomic_add v26, v27, {WS}, s{sT0} offen sc0
v_mov_b32 v28, {LQ}
s_waitcnt vmcnt(0)
v_readfirstlane_b32 s{sID}, v26
s_nop 1
v_mov_b32 v26, s{sID}
ds_write_b32 v28, v26
s_waitcnt lgkmcnt(0)
{Lsk}:
s_barrier
v_mov_b32 v28, {LQ}
ds_read_b32 v26, v28
s_waitcnt lgkmcnt(0)
v_readfirstlane_b32 s{sID}, v26
s_barrier
s_cmp_ge_u32 s{sID}, 672
s_cbranch_scc1 {Lexit}""")
    if hook: hook(a)
    def dec(base, sh, extra=0):
        a(f"""s_sub_u32 s{sT0}, s{sID}, {base}
s_lshr_b32 s{sTT}, s{sT0}, {sh}
s_add_u32 s{sTT}, s{sTT}, {extra}
s_and_b32 s{sH}, s{sT0}, {(1 << sh) - 1}
s_lshl_b32 s{sSEG}, s{sTT}, 2
s_add_u32 s{sSEG}, s{sSEG}, s{sW}""")
    L1, L2, L3, L4 = (a.lab("Ld") for _ in range(4))
    a(f"s_cmp_lt_u32 s{sID}, 256\ns_cbranch_scc0 {L1}"); dec(0, 4); a(f"s_branch {LV}\n{L1}:")
    a(f"s_cmp_lt_u32 s{sID}, 384\ns_cbranch_scc0 {L2}"); dec(256, 3); a(f"s_branch {LF1}\n{L2}:")
    a(f"s_cmp_lt_u32 s{sID}, 448\ns_cbranch_scc0 {L3}"); dec(384, 4); a(f"s_branch {LS}\n{L3}:")
    a(f"s_cmp_lt_u32 s{sID}, 480\ns_cbranch_scc0 {L4}"); dec(448, 1); a(f"s_branch {LF2}\n{L4}:")
    dec(480, 4, 4); a(f"s_branch {LS}")
    for L, f in ((LV, item_V), (LF1, item_F1), (LF2, item_F2), (LS, item_S)):
        a(f".p2align 6\n{L}:"); f(a); a(f"s_branch {Ln}")
```

```python
from asmlib import *
from layout import *
WS = "s[8:11]"
OOB = 0x40000000
def vr(b, n): return f"v[{b}:{b+n-1}]"
NG = 256
NLN = 64
NINIT = 16
K1_GRID = NG + NLN + NINIT
K1_LDS = 3*45056
SCALE = 0x3DB8AA3B

def gen_k1(a):
    kernel_begin(a, "k1_kernel")
    a(f"""s_cmp_ge_u32 s2, {K1_GRID}
s_cbranch_scc1 K1end
s_load_dwordx2 s[6:7], s[0:1], 104
s_load_dwordx4 s[40:43], s[0:1], 0
s_load_dwordx8 s[44:51], s[0:1], 16
v_lshrrev_b32 v1, 6, v0
v_and_b32 v2, 63, v0
v_readfirstlane_b32 s17, v1
s_waitcnt lgkmcnt(0)""")
    srd(a, 8, 6, 0x10000000)
    a(f"""s_cmp_ge_u32 s2, {NG+NLN}
s_cbranch_scc1 K1init
s_cmp_ge_u32 s2, {NG}
s_cbranch_scc1 K1ln""")
    a("""s_and_b32 s18, s2, 7
s_lshl_b32 s18, s18, 2
s_lshr_b32 s19, s2, 6
s_add_u32 s18, s18, s19
s_lshr_b32 s20, s18, 1          ; h
s_and_b32 s21, s18, 1           ; isB
s_bfe_u32 s22, s2, 0x10005      ; kh
s_bfe_u32 s23, s2, 0x20003      ; nq
s_cmp_eq_u32 s21, 0
s_cselect_b32 s24, s44, s48
s_cselect_b32 s25, s45, s49
s_cselect_b32 s26, s46, s50
s_cselect_b32 s27, s47, s51""")
    srd(a, 12, 24, 448*8192)
    srd(a, 28, 26, 448*8192)
    a("""v_lshrrev_b32 v3, 3, v2
v_lshrrev_b32 v4, 4, v2
v_and_b32 v5, 7, v2
v_xor_b32 v5, v5, v4
v_lshlrev_b32 v10, 13, v3
v_lshl_add_u32 v10, v5, 4, v10       ; even i
v_xor_b32 v11, 64, v10               ; odd i
v_and_b32 v5, 15, v2
v_lshrrev_b32 v6, 1, v5
v_xor_b32 v6, v6, v4
v_and_b32 v7, 1, v2
v_mul_u32_u24 v8, 896, v4
v_lshl_add_u32 v12, v7, 4, v8
v_lshl_add_u32 v13, v6, 5, v12
v_xor_b32 v6, 4, v6
v_lshl_add_u32 v14, v6, 5, v12
v_mov_b32 v9, 0x40000000
v_cmp_gt_u32 vcc, 7, v6
s_nop 1
v_cndmask_b32 v14, v9, v14, vcc
v_xor_b32 v6, 4, v6
v_cmp_gt_u32 vcc, 7, v6
s_nop 1
v_cndmask_b32 v13, v9, v13, vcc
s_mul_i32 s32, s22, 224*8192
s_lshl_b32 s33, s20, 9
s_add_u32 s32, s32, s33
s_mul_i32 s34, s23, 112*8192
s_add_u32 s34, s34, s33
s_mul_i32 s35, s20, 256*896
s_mul_i32 s36, s23, 224
s_add_u32 s35, s35, s36
""")
    CH = 45056
    def issue(chunk, isB):
        buf = (chunk % 3)*CH
        a(f"s_and_b32 s37, s17, 1\ns_cmp_eq_u32 s37, 0\ns_cselect_b64 vcc, -1, 0\nv_cndmask_b32 v15, v11, v10, vcc")
        for ii in range(7):
            a(f"""s_lshl_b32 s37, s17, 16
s_add_u32 s37, s37, {ii*4*65536 + chunk*128}
s_add_u32 s37, s37, s32
s_lshl_b32 s38, s17, 10
s_add_u32 m0, s38, {buf + ii*4096}
s_nop 0
buffer_load_dwordx4 v15, s[12:15], s37 offen lds""")
        if not isB:
            for ii in range(4):
                L = a.lab("K1s")
                if ii == 3: a(f"s_cmp_ge_u32 s17, 2\ns_cselect_b32 s39, {OOB}, 0")
                else: a("s_mov_b32 s39, 0")
                a(f"""s_lshl_b32 s37, s17, 16
s_add_u32 s37, s37, {ii*4*65536 + chunk*128}
s_add_u32 s37, s37, s34
s_add_u32 s37, s37, s39
s_lshl_b32 s38, s17, 10
s_add_u32 m0, s38, {buf + 28672 + ii*4096}
s_nop 0
buffer_load_dwordx4 v15, s[28:31], s37 offen lds""")
        else:
            for ii in range(4):
                if ii == 0: a("s_lshr_b32 s37, s17, 1\ns_cmp_eq_u32 s37, 0\ns_cselect_b64 vcc, -1, 0\nv_cndmask_b32 v16, v14, v13, vcc")
                a(f"""s_mul_i32 s37, s17, {4*896}
s_add_u32 s37, s37, {(ii*16 + chunk*64)*896}
s_add_u32 s37, s37, s35
s_lshl_b32 s38, s17, 10
s_add_u32 m0, s38, {buf + 28672 + ii*4096}
s_nop 0
buffer_load_dwordx4 v16, s[28:31], s37 offen lds""")
    a("""v_and_b32 v5, 15, v2
v_lshrrev_b32 v6, 2, v5
v_and_b32 v7, 3, v5
v_lshl_add_u32 v6, v6, 3, v7
s_lshl_b32 s37, s17, 6
v_add_u32 v6, s37, v6                ; + 64w  (pairs 2w,2w+1)
v_bfe_u32 v7, v6, 1, 3
v_xor_b32 v7, v7, v4                 ; g ^ sw
v_lshlrev_b32 v20, 7, v6
v_lshl_add_u32 v20, v7, 4, v20
v_xor_b32 v21, 64, v20
v_xor_b32 v22, 32, v20
v_add_u32 v22, 512, v22
v_xor_b32 v23, 64, v22
v_lshrrev_b32 v7, 1, v5
v_xor_b32 v7, v7, v4
v_lshlrev_b32 v24, 7, v5
v_lshl_add_u32 v24, v7, 4, v24
v_add_u32 v24, 28672, v24
v_xor_b32 v25, 64, v24
v_bfe_u32 v6, v2, 2, 2
v_lshl_add_u32 v7, v4, 3, v6
v_lshlrev_b32 v26, 8, v7
v_and_b32 v7, 3, v2
v_lshl_add_u32 v26, v7, 3, v26
v_add_u32 v26, 28672, v26
v_and_b32 v7, 1, v4
v_lshl_add_u32 v6, v7, 2, v6         ; f
""")
    for t in range(7):
        a(f"v_xor_b32 v7, {t}, v6\nv_lshl_add_u32 v{27+t}, v7, 5, v26")
    ACC = 64; RA = 40; CB = 176
    for r in range(ACC, ACC+112): a(f"v_mov_b32 v{r}, 0")
    def body(isB):
        for c in range(2): issue(c, isB)
        for c in range(4):
            a(f"s_waitcnt vmcnt({11 if c < 3 else 0})\ns_barrier")
            if c + 2 < 4: issue(c+2, isB)
            buf = 0
            if c > 0:
                dl = CH if c < 3 else -2*CH
                for r in (list(range(20, 24)) + (list(range(27, 34)) if isB else [24, 25])):
                    a(f"v_add_u32 v{r}, {dl & 0xffffffff}, v{r}")
            for ks in range(2):
                for i in range(4):
                    a(f"ds_read_b128 {vr(RA+4*i,4)}, v{20 + 2*(i & 1) + ks} offset:{buf + (i >> 1)*4096}")
                for t in range(7):
                    if not isB:
                        a(f"ds_read_b128 {vr(CB+4*t,4)}, v{24+ks} offset:{buf + t*2048}")
                    else:
                        a(f"ds_read_b64_tr_b16 {vr(CB+4*t,2)}, v{27+t} offset:{buf + ks*8192}")
                        a(f"ds_read_b64_tr_b16 {vr(CB+4*t+2,2)}, v{27+t} offset:{buf + ks*8192 + 1024}")
                for t in range(7):
                    n = (6-t)*(2 if isB else 1)
                    a(f"s_waitcnt lgkmcnt({min(n,15)})")
                    for i in range(4):
                        d = ACC + (t*4 + i)*4
                        a(f"v_mfma_f32_16x16x32_bf16 {vr(d,4)}, {vr(RA+4*i,4)}, {vr(CB+4*t,4)}, {vr(d,4)}")
    a("s_cmp_eq_u32 s21, 0\ns_cbranch_scc0 K1gB")
    body(False)
    a(f"""s_mov_b32 s39, {SCALE}
s_mul_i32 s52, s20, {28*TILE_B}
s_mul_i32 s53, s23, {7*TILE_B}
s_add_u32 s52, s52, s53
s_add_u32 s52, s52, {ACAN}
s_mov_b32 s54, {TILE_B}
s_branch K1epi
K1gB:""")
    body(True)
    a(f"""s_mov_b32 s39, 1.0
s_mul_i32 s52, s20, {TILE_B}
s_mul_i32 s53, s23, {7*16*TILE_B}
s_add_u32 s52, s52, s53
s_add_u32 s52, s52, {BCAN}
s_mov_b32 s54, {16*TILE_B}
K1epi:
s_mul_i32 s53, s22, 7168
s_add_u32 s52, s52, s53
s_lshl_b32 s53, s17, 11
s_add_u32 s52, s52, s53
v_lshlrev_b32 v3, 4, v2
v_add_u32 v5, 1024, v3
s_cmp_eq_u32 s17, 3
s_cselect_b32 s53, {OOB}, 0
v_add_u32 v5, s53, v5
s_nop 4""")
    for t in range(7):
        for p in range(2):
            d0 = ACC + (t*4 + 2*p)*4
            for r in range(8): a(f"v_mul_f32 v{d0+r}, s39, v{d0+r}")
            for r in range(4): a(f"v_cvt_pk_bf16_f32 v{d0+r}, v{d0+2*r}, v{d0+2*r+1}")
            a(f"buffer_store_dwordx4 {vr(d0,4)}, v{3 if p == 0 else 5}, {WS}, s52 offen")
        a("s_add_u32 s52, s52, s54")
    a("s_endpgm")
    a("K1ln:")
    srd(a, 12, 40, 2048*896)
    a(f"""s_sub_u32 s18, s2, {NG}          ; seg
s_lshl_b32 s19, s17, 3
s_lshl_b32 s20, s18, 5
s_add_u32 s20, s20, s19
s_mul_i32 s20, s20, 896
v_lshlrev_b32 v3, 4, v2
v_mov_b32 v9, {OOB}
v_cmp_gt_u32 vcc, 56, v2
s_nop 1
v_cndmask_b32 v4, v9, v3, vcc
v_cndmask_b32 v5, 0, 1.0, vcc
s_mul_i32 s21, s19, 1040
v_add_u32 v6, s21, v3
s_mov_b32 s22, 0x3B124925
s_mov_b32 s23, 0x3727C5AC""")
    for r in range(8):
        a(f"buffer_load_dwordx4 {vr(16+4*r,4)}, v4, s[12:15], s20 offen offset:{0}\ns_add_u32 s20, s20, 896")
    def wsum(v):
        for ctl in ("quad_perm:[1,0,3,2]", "quad_perm:[2,3,0,1]", "row_half_mirror", "row_mirror"):
            a(f"s_nop 1\nv_add_f32_dpp v{v}, v{v}, v{v} {ctl} row_mask:0xf bank_mask:0xf")
        a(f"""v_mov_b32 v14, v{v}
s_nop 1
v_permlane16_swap_b32 v14, v{v}
v_add_f32 v{v}, v{v}, v14
v_mov_b32 v14, v{v}
s_nop 1
v_permlane32_swap_b32 v14, v{v}
v_add_f32 v{v}, v{v}, v14""")
    for r in range(8):
        b = 16 + 4*r
        a(f"s_waitcnt vmcnt({7-r})")
        for i in range(4):
            a(f"v_lshlrev_b32 v{60+2*i}, 16, v{b+i}\nv_and_b32 v{61+2*i}, 0xffff0000, v{b+i}")
        a("""v_add_f32 v12, v60, v61
v_add_f32 v13, v62, v63
v_add_f32 v12, v12, v64
v_add_f32 v13, v13, v65
v_add_f32 v12, v12, v66
v_add_f32 v13, v13, v67
v_add_f32 v12, v12, v13""")
        wsum(12)
        a("v_mul_f32 v12, s22, v12")
        for i in range(8): a(f"v_sub_f32 v{60+i}, v{60+i}, v12")
        a("v_mul_f32 v13, v60, v60")
        for i in range(1, 8): a(f"v_fmac_f32 v13, v{60+i}, v{60+i}")
        a("v_mul_f32 v13, v13, v5")
        wsum(13)
        a("v_mov_b32 v14, s23\nv_fmac_f32 v14, s22, v13\nv_rsq_f32 v14, v14\ns_nop 0")
        for i in range(8): a(f"v_mul_f32 v{60+i}, v{60+i}, v14")
        for i in range(4): a(f"v_cvt_pk_bf16_f32 v{b+i}, v{60+2*i}, v{61+2*i}")
        a(f"ds_write_b128 v6, {vr(b,4)} offset:{r*1040}")
    a(f"""s_waitcnt lgkmcnt(0)
s_barrier
s_mul_i32 s20, s18, 28672
s_mul_i32 s21, s17, 7168
s_add_u32 s20, s20, s21
s_add_u32 s24, s20, {XNAT}
s_add_u32 s25, s20, {XREC}
v_and_b32 v7, 31, v2
v_mul_u32_u24 v7, 1040, v7
v_lshrrev_b32 v8, 5, v2
v_lshl_add_u32 v7, v8, 4, v7
s_mul_i32 s21, s17, 224
v_add_u32 v7, s21, v7
; XREC: unit q = 7w+i : tile=q/14 idx=q%14 ; lane (gB,key): lds = (16tile+key)*1040 + (2idx + (gB>>1))*32 + (gB&1)*4
v_and_b32 v8, 15, v2
v_mul_u32_u24 v8, 1040, v8
v_lshrrev_b32 v10, 5, v2
v_lshl_add_u32 v8, v10, 5, v8
v_bfe_u32 v10, v2, 4, 1
v_lshl_add_u32 v8, v10, 2, v8
s_lshr_b32 s21, s17, 1
s_mul_i32 s21, s21, {16*1040}
s_and_b32 s26, s17, 1
s_mul_i32 s26, s26, 448
s_add_u32 s21, s21, s26
v_add_u32 v8, s21, v8""")
    for i in range(7):
        a(f"ds_read_b128 {vr(16+4*i,4)}, v7 offset:{i*32}")
        a(f"ds_read2_b32 {vr(44+4*i,2)}, v8 offset0:{i*16} offset1:{i*16+2}")
        a(f"ds_read2_b32 {vr(46+4*i,2)}, v8 offset0:{i*16+4} offset1:{i*16+6}")
    a("s_waitcnt lgkmcnt(0)\nv_add_u32 v10, 4096, v3")
    for i in range(7):
        va, off = (3, i*1024) if i < 4 else (10, (i-4)*1024)
        a(f"buffer_store_dwordx4 {vr(16+4*i,4)}, v{va}, {WS}, s24 offen offset:{off}")
        a(f"buffer_store_dwordx4 {vr(44+4*i,4)}, v{va}, {WS}, s25 offen offset:{off}")
    a("s_endpgm")
    a("K1init:")
    a(f"""s_sub_u32 s18, s2, {NG+NLN}
v_lshlrev_b32 v3, 4, v0
v_mov_b32 v4, -1
v_mov_b32 v5, -1
v_mov_b32 v6, -1
v_mov_b32 v7, -1
s_lshl_b32 s20, s18, 15
s_add_u32 s20, s20, {MEMALL}""")
    for i in range(8):
        a(f"buffer_store_dwordx4 v[4:7], v3, {WS}, s20 offen\ns_add_u32 s20, s20, 4096")
    a(f"""s_cmp_eq_u32 s18, 1
s_cbranch_scc0 K1i2
s_mov_b32 s20, {MR+8192}
buffer_store_dwordx4 v[4:7], v3, {WS}, s20 offen
s_mov_b32 s20, {MR+8192+4096}
buffer_store_dwordx4 v[4:7], v3, {WS}, s20 offen
s_mov_b32 s20, {PR}""")
    for i in range(8):
        a(f"buffer_store_dwordx4 v[4:7], v3, {WS}, s20 offen\ns_add_u32 s20, s20, 4096")
    a(f"""s_endpgm
K1i2:
s_cmp_eq_u32 s18, 2
s_cbranch_scc0 K1i3
v_mov_b32 v4, 0
v_mov_b32 v5, 0
v_mov_b32 v6, 0
v_mov_b32 v7, 0
s_mov_b32 s20, {CNT}""")
    for i in range(12):
        a(f"buffer_store_dwordx4 v[4:7], v3, {WS}, s20 offen\ns_add_u32 s20, s20, 4096")
    a(f"""s_endpgm
K1i3:
s_cmp_eq_u32 s18, 0
s_cbranch_scc0 K1end""")
    srd(a, 12, 42, 8*896)
    for it in range(7):
        a(f"""v_add_u32 v8, {it*256}, v0
v_lshrrev_b32 v9, 6, v8
v_lshlrev_b32 v9, 5, v9
v_bfe_u32 v10, v8, 4, 2
v_lshlrev_b32 v10, 1, v10
v_bfe_u32 v11, v8, 2, 1
v_add_u32 v10, v10, v11
v_mul_u32_u24 v10, 896, v10
v_add_u32 v9, v9, v10
v_bfe_u32 v10, v8, 3, 1
v_lshl_add_u32 v9, v10, 2, v9
v_and_b32 v10, 3, v8
v_lshl_add_u32 v9, v10, 3, v9
buffer_load_dword v12, v9, s[12:15], 0 offen
v_lshlrev_b32 v8, 2, v8
s_mov_b32 s20, {MR}
s_waitcnt vmcnt(0)
buffer_store_dword v12, v8, {WS}, s20 offen""")
    a("K1end:\ns_endpgm")
    kernel_desc(a, "k1_kernel", 208)

if __name__ == "__main__":
    a = Asm()
    a(f"; @launch kernel=k1_kernel grid=({K1_GRID},1,1) block=(256,1,1) lds={K1_LDS}")
    a('.amdgcn_target "amdgcn-amd-amdhsa--gfx950"\n.text')
    gen_k1(a)
    open("k1.s", "w").write(a.text())
```

```python
from asmlib import *
from layout import *
WS = "s[8:11]"
def vr(b, n): return f"v[{b}:{b+n-1}]"
K3_LDS = 4*14*1088
def gen_k3(a):
    kernel_begin(a, "k3_kernel")
    a(f"""s_cmp_ge_u32 s2, 256
s_cbranch_scc1 K3end
s_load_dwordx2 s[6:7], s[0:1], 104
s_load_dwordx2 s[4:5], s[0:1], 0
s_load_dwordx2 s[20:21], s[0:1], 88
v_lshrrev_b32 v1, 6, v0
v_and_b32 v2, 63, v0
v_readfirstlane_b32 s17, v1
v_lshlrev_b32 v3, 4, v2
s_lshr_b32 s18, s2, 2           ; seg
s_and_b32 s19, s2, 3            ; rq
s_waitcnt lgkmcnt(0)""")
    srd(a, 8, 6, 0x10000000); srd(a, 12, 4, 2048*896); srd(a, 24, 20, 2048*896)
    PF, VF, AC = 8, 48, 188
    a(f"""s_lshl_b32 s28, s18, 15
s_lshl_b32 s29, s17, 12
s_add_u32 s28, s28, s29
s_add_u32 s28, s28, {PX}
s_add_u32 s30, s28, 16384
s_lshl_b32 s31, s18, 13
s_lshl_b32 s29, s17, 10
s_add_u32 s31, s31, s29
s_add_u32 s31, s31, {PM}
s_add_u32 s32, s31, 4096
s_mul_i32 s33, s18, 28
s_mul_i32 s34, s19, 7
s_add_u32 s33, s33, s34          ; seg*28 + r0
s_lshl_b32 s34, s33, 14
s_lshl_b32 s35, s17, 12
s_add_u32 s34, s34, s35
s_add_u32 s34, s34, {VOOP}
s_lshl_b32 s35, s33, 12
s_add_u32 s35, s35, s29
s_add_u32 s35, s35, {VOMEM}""")
    for mt in range(2):
        for hh in range(4):
            a(f"buffer_load_dwordx4 {vr(PF+20*mt+4*hh,4)}, v3, {WS}, s{(28, 30)[mt]} offen offset:{hh*1024}")
        a(f"buffer_load_dwordx4 {vr(PF+20*mt+16,4)}, v3, {WS}, s{(31, 32)[mt]} offen")
    for r in range(7):
        for hh in range(4):
            a(f"buffer_load_dwordx4 {vr(VF+20*r+4*hh,4)}, v3, {WS}, s34 offen offset:{hh*1024}")
        a(f"buffer_load_dwordx4 {vr(VF+20*r+16,4)}, v3, {WS}, s35 offen\ns_add_u32 s34, s34, 16384\ns_add_u32 s35, s35, 4096")
    a(f"""s_mov_b32 s36, 0x12492493
v_mul_hi_u32 v4, v0, s36             ; tid/14
v_mul_u32_u24 v5, 14, v4
v_sub_u32 v5, v0, v5
v_add_u32 v6, 256, v0
v_mul_hi_u32 v7, v6, s36
v_mul_u32_u24 v244, 14, v7
v_sub_u32 v6, v6, v244
v_mul_u32_u24 v244, 896, v4
v_lshl_add_u32 v244, v5, 4, v244
v_mul_u32_u24 v245, 896, v7
v_lshl_add_u32 v245, v6, 4, v245
v_mov_b32 v246, 0x40000000
v_cmp_gt_u32 vcc, 192, v0
s_nop 1
v_cndmask_b32 v245, v246, v245, vcc
s_mul_i32 s37, s18, 28672
s_mul_i32 s38, s19, 224
s_add_u32 s37, s37, s38
s_add_u32 s38, s37, {GB}
v_lshrrev_b32 v246, 4, v2
v_mul_u32_u24 v246, 272, v246
v_and_b32 v247, 15, v2
v_lshl_add_u32 v246, v247, 2, v246
s_mul_i32 s39, s17, {14*1088}
v_add_u32 v246, s39, v246
; LDS read addr for chunk (tok,ch): tile = (ch>>1)*2 + (tok>>4) ; row = tok&15 ; col = (ch&1)*8""")
    for (tk, ch, dst) in ((4, 5, 247), (7, 6, 248)):
        a(f"""v_lshrrev_b32 v249, 1, v{ch}
v_lshlrev_b32 v249, 1, v249
v_bfe_u32 v250, v{tk}, 4, 1
v_add_u32 v249, v249, v250
v_mul_u32_u24 v249, 1088, v249
v_and_b32 v250, 15, v{tk}
v_mul_u32_u24 v250, 68, v250
v_add_u32 v249, v249, v250
v_and_b32 v250, 1, v{ch}
v_lshl_add_u32 v{dst}, v250, 5, v249""")
    for r in range(7):
        a(f"s_waitcnt vmcnt({5*(6-r)})")
        for k in range(5):
            for mt in range(2):
                d = AC + (2*r + mt)*4
                a(f"v_mfma_f32_16x16x32_bf16 {vr(d,4)}, {vr(PF+20*mt+4*k,4)}, {vr(VF+20*r+4*k,4)}, {'0' if k == 0 else vr(d,4)}")
    a(f"""buffer_load_dwordx4 v[8:11], v244, s[12:15], s37 offen
buffer_load_dwordx4 v[12:15], v244, {WS}, s38 offen
buffer_load_dwordx4 v[16:19], v245, s[12:15], s37 offen
buffer_load_dwordx4 v[20:23], v245, {WS}, s38 offen
s_nop 7""")
    for t in range(14):
        d = AC + 4*t
        a(f"v_add_u32 v251, {t*1088}, v246")
        a(f"ds_write2_b32 v251, v{d}, v{d+1} offset0:0 offset1:17")
        a(f"ds_write2_b32 v251, v{d+2}, v{d+3} offset0:34 offset1:51")
    a("s_waitcnt lgkmcnt(0)\ns_barrier")
    for ci, (adr, xb, oa) in enumerate(((247, 8, 244), (248, 16, 245))):
        for w in range(4):
            a(f"v_add_u32 v251, {w*14*1088}, v{adr}")
            for j in range(4):
                a(f"ds_read2_b32 {vr(48+8*w+2*j,2)}, v251 offset0:{2*j} offset1:{2*j+1}")
        a("s_waitcnt lgkmcnt(0)")
        for j in range(8):
            a(f"v_add_f32 v{48+j}, v{48+j}, v{56+j}\nv_add_f32 v{64+j}, v{64+j}, v{72+j}\nv_add_f32 v{48+j}, v{48+j}, v{64+j}")
        a(f"s_waitcnt vmcnt({2 if ci == 0 else 1})")
        for j in range(4):
            a(f"""v_lshlrev_b32 v80, 16, v{xb+j}
v_and_b32 v81, 0xffff0000, v{xb+j}
v_lshlrev_b32 v82, 16, v{xb+4+j}
v_and_b32 v83, 0xffff0000, v{xb+4+j}
v_fmac_f32 v80, v{48+2*j}, v82
v_fmac_f32 v81, v{49+2*j}, v83
v_cvt_pk_bf16_f32 v{84+4*ci+j}, v80, v81""")
        a(f"buffer_store_dwordx4 {vr(84+4*ci,4)}, v{oa}, s[24:27], s37 offen")
    a("K3end:\ns_endpgm")
    kernel_desc(a, "k3_kernel", 256)
```

```python
import numpy as np
from model import *
KB = 1024; MB = 1 << 20
ACAN = 0
BCAN = 0x0700000
XREC = 0x0E00000
VOOP = 0x1000000
VOMEM = 0x2C00000
MEMALL = 0x3300000
MR = 0x3400000
SR = 0x3420000
PR = 0x3440000
CNT = 0x3450000
XNAT = 0x3500000
HF = 0x3700000
GB = 0x3E00000
PX = 0x4000000
PM = 0x4200000
TILE_B = 14336
def row16(i, hf): return 4*(i >> 1) + 2*hf + (i & 1)

def build_acan(A):
    out = np.zeros((16, 28, 7, 2, 4, 16, 8), np.uint16)
    Ab = f2b(A)
    for h in range(16):
        for r in range(28):
            out[h, r] = Ab[h][:, 16*r:16*r+16].reshape(7, 2, 4, 8, 16).transpose(0, 1, 2, 4, 3)
    return out
def build_bcan(B):
    out = np.zeros((28, 16, 7, 2, 4, 16, 8), np.uint16)
    Bb = f2b(B)
    for r in range(28):
        for h in range(16):
            blk = Bb[h][:, 16*r:16*r+16]
            out[r, h] = blk.reshape(7, 2, 4, 8, 16).transpose(0, 1, 2, 4, 3)
    return out
def build_xrec(xn):
    xb = f2b(xn).reshape(64, 2, 16, 28, 8, 2)
    out = np.zeros((64, 2, 14, 4, 16, 4, 2), np.uint16)
    for idx in range(14):
        for gB in range(4):
            b = 2*idx + (gB >> 1); x = gB & 1
            out[:, :, idx, gB] = xb[:, :, :, b][:, :, :, [x, x+2, x+4, x+6], :]
    return out
def tok_of(gB, e):
    j2, u = gB >> 1, gB & 1
    return 16*j2 + 8*(e >> 2) + 4*u + (e & 3)
def build_voop(VOx):
    vb = f2b(VOx).reshape(64, 32, 4, 4, 28, 16)
    out = np.zeros((64, 28, 4, 4, 4, 16, 8), np.uint16)
    for gB in range(4):
        for e in range(8):
            out[:, :, :, :, gB, :, e] = vb[:, tok_of(gB, e)].transpose(0, 3, 1, 2, 4)
    return out
def build_mring(mem):
    mb = f2b(mem).reshape(8, 28, 8, 2)
    out = np.zeros((28, 16, 4, 2), np.uint16)
    for i in range(8):
        for hf in range(2):
            out[:, row16(i, hf)] = mb[i][:, [hf, hf+2, hf+4, hf+6]]
    return out
def build_memkey(mem):
    mb = f2b(mem).reshape(8, 28, 8, 2)
    out = np.zeros((28, 2, 8, 4, 2), np.uint16)
    for u in range(2):
        out[:, u] = mb[:, :, [2*u, 2*u+1, 4+2*u, 5+2*u]].transpose(1, 0, 2, 3)
    return out
def parse_memkey(raw):
    a = raw.view(np.uint16)[:28*2*8*8].reshape(28, 2, 8, 4, 2)
    m = np.zeros((8, 28, 8, 2), np.uint16)
    for u in range(2):
        m[:, :, [2*u, 2*u+1, 4+2*u, 5+2*u]] = a[:, u].transpose(1, 0, 2, 3)
    return b2f(m.reshape(8, 448))
def parse_vomem(raw):
    a = raw.view(np.uint16).reshape(28, 4, 4, 16, 4, 2)
    return b2f(a.transpose(1, 4, 2, 5, 0, 3).reshape(16, 8, 448).copy())

def build_xnat(xn):
    xb = f2b(xn).reshape(64, 32, 28, 2, 8)
    return np.ascontiguousarray(xb.transpose(0, 2, 3, 1, 4))
```

```python
import numpy as np
def b2f(u): return (u.astype(np.uint32) << 16).view(np.float32)
def f2b(f):
    u = np.ascontiguousarray(f, dtype=np.float32).view(np.uint32)
    r = ((u + 0x7fff + ((u >> 16) & 1)) >> 16).astype(np.uint16)
    return r
def rb(f): return b2f(f2b(f))
def load(seed):
    d = np.load(f'inputs{seed}.npz')
    I = {k: (b2f(d[k]) if d[k].dtype == np.uint16 else d[k]) for k in d.files}
    ref = b2f(np.load(f'ref{seed}.npy'))
    return I, ref
def model(I, exact=False):
    r = (lambda a: a) if exact else rb
    x = I['A_x'][0]; mem0 = I['A_mem0'][0]
    Wq, Wk, Wv, Wo = I['A_Wq'], I['A_Wk'], I['A_Wv'], I['A_Wo']
    m = x.mean(-1, keepdims=True); v = ((x-m)**2).mean(-1, keepdims=True)
    xn = r((x-m)/np.sqrt(v+1e-5))
    H=16
    LOG2E=1.4426950408889634
    A = np.stack([r((Wq[:,h,:] @ Wk[:,h,:].T) * (LOG2E/16.0)) for h in range(H)])
    B = np.stack([r(Wv[:,h,:] @ Wo[h]) for h in range(H)])
    VOx = r(np.einsum('tk,hkn->thn', xn, B, optimize=True))
    Tx = r(np.einsum('tk,hkn->thn', xn, A, optimize=True))
    mem = mem0.copy()
    mems=[]; outs=[]
    for s in range(64):
        mems.append(mem)
        xs = xn[32*s:32*s+32]
        hh = np.concatenate([mem, xs], 0)
        Tm = r(np.einsum('ik,hkn->hin', mem, A, optimize=True))
        VOm = r(np.einsum('ik,hkn->hin', mem, B, optimize=True))
        VO = np.concatenate([VOm, VOx[32*s:32*s+32].transpose(1,0,2)], 1)
        S = Tm @ hh.T
        P = np.exp2(S - S.max(-1, keepdims=True)); P = r(P / P.sum(-1, keepdims=True))
        memn = r(np.einsum('hij,hjn->in', P, VO, optimize=True))
        Sx = Tx[32*s:32*s+32].transpose(1,0,2) @ hh.T
        mask = (np.arange(8,40)[:,None] >= np.arange(40)[None,:])
        Sx = np.where(mask[None], Sx, -1e30)
        Px = np.exp2(Sx - Sx.max(-1, keepdims=True)); Px = r(Px / Px.sum(-1, keepdims=True))
        outs.append(np.einsum('hij,hjn->in', Px, VO, optimize=True))
        mem = memn
    sA = np.concatenate(outs, 0)
    g = xn @ I['B_w_gate']; u = xn @ I['B_w_up']
    hmid = r(g/(1+np.exp(-g)) * u)
    f = hmid @ I['B_w_down']
    G = f/(1+np.exp(-f))
    out = x + sA*G
    return dict(xn=xn, A=A, B=B, VOx=VOx, Tx=Tx, mems=np.stack(mems), sA=sA, G=G, out=r(out), hmid=hmid)
if __name__ == '__main__':
    for seed in (0,1):
        I, ref = load(seed)
        print(ref[0,0,:8])
        for exact in (True, False):
            M = model(I, exact)
            err = np.abs(M['out'] - ref[0])
            print(seed, exact, 'maxerr', err.max(), 'mean', err.mean(), 'mem rms', [float(np.sqrt((M['mems'][s]**2).mean())) for s in (0,1,2,30,63)])
```

```python
from asmlib import *
from layout import ACAN, BCAN, XREC, VOOP, VOMEM, MEMALL, MR, PR, CNT, TILE_B
WS = "s[8:11]"
FLGM = CNT + 0x8000
FLGP = CNT + 0xA000
OOB = 0x40000000
sCU, sW, sS_, sBUD = 16, 17, 18, 19
sMc, sMn, sP, sPp, sVO, sX, sVM, sVMp, sMA, sCN, sT0, sT1, sT2, sB, sFM, sFP = range(20, 36)
sX1, sX2, sX3, sVO2 = 36, 37, 38, 39
vL16, vM0, vIdx, vT, vT2, vZ, vStep, vFR, vFW, vF0, vPoi = 2, 3, 10, 11, 12, 13, 14, 15, 16, 17, 20
vTW, vSW, vKM, vAL, vSX, vSM, vP0, vPM, vMask = 21, 22, 23, 24, 25, 26, 27, 28, 29
vPx, vPm, vRW, vRR, vMP, vBL, vTch, vMA0, vMA1, vCnt, vFRP = 21, 22, 23, 24, 25, 26, 27, 28, 29, 30, 31
MEMR = 32
TACC, XOP, ASTG, SACC, SMX = 60, 88, (144, 152), 160, 164
VACC, VOX, VOM, PRG, PACC, BSTG = 60, 92, 124, 140, 152, (160, 168, 176, 184)
LM, LT, LS, LA = 0, 8192, 15360, 20480
LR, LB = 8192, 16384
STAMP = ABS = SAME = False
OPT = dict(fp=2, fm=2, s1=4, o2=18, s2=7, lead=2, vw=0)
PRE = ''
def vr(b, n): return f"v[{b}:{b+n-1}]"
def ar(b, n): return f"a[{b}:{b+n-1}]"
def smf(a, d, A, B): a(f"v_smfmac_f32_16x16x64_bf16 {vr(d,4)}, {vr(A,4)}, {B}, v{vIdx}")
def ureg(u, vbase): return ("a", u*8) if u < 32 else ("v", vbase + (u-32)*8)
def uop(u, vbase):
    p, b = ureg(u, vbase); return f"{p}[{b}:{b+7}]"
def Aop(t, k): return uop(t*7 + k, 176)
def Bop(t, k): return uop(k*8 + t, 192)
def zero(a, *rs):
    for b, n in rs:
        for r in range(b, b+n): a(f"v_mov_b32 v{r}, 0")
def st(a, i):
    if STAMP: a(f"{'s_memrealtime' if ABS else 's_memtime'} s[{50+2*i}:{51+2*i}]")
def st_acc(a, used):
    if not STAMP: return
    a("s_waitcnt lgkmcnt(0)")
    if ABS:
        L = a.lab("Labs")
        a(f"s_cmp_lg_u32 s{sS_}, 31\ns_cbranch_scc1 {L}")
        for i in used: a(f"s_mov_b32 s{72+i}, s{50+2*i}")
        a(f"{L}:"); return
    prev = 70
    for i in used:
        a(f"s_sub_u32 s71, s{50+2*i}, s{prev}\ns_add_u32 s{72+i}, s{72+i}, s71"); prev = 50 + 2*i
    a(f"s_mov_b32 s70, s{prev}")

class LG:
    def __init__(s, a): s.a = a; s.q = []
    def op(s, txt, tag=None): s.a(txt); s.q.append(tag)
    def wait(s, tag):
        if tag not in s.q: return
        i = len(s.q) - 1 - s.q[::-1].index(tag)
        n = len(s.q) - 1 - i
        s.a(f"s_waitcnt lgkmcnt({min(n, 15)})")
        if n <= 15: s.q = s.q[i+1:]
    def all(s): s.a("s_waitcnt lgkmcnt(0)"); s.q = []

def sel(a, dst, cond_lt, vsrc_cmp, vtrue, other=OOB):
    a(f"v_mov_b32 v45, {other}\nv_cmp_gt_u32 vcc, {cond_lt}, v{vsrc_cmp}\ns_nop 1\nv_cndmask_b32 v{dst}, v45, v{vtrue}, vcc")

def setup(a):
    a(f"""
v_lshrrev_b32 v1, 6, v0
s_nop 0
v_readfirstlane_b32 s{sW}, v1
v_and_b32 v1, 63, v0
v_lshlrev_b32 v{vL16}, 4, v1
s_lshl_b32 s{sT0}, s{sW}, 1""")
    for k in range(7):
        a(f"""s_add_u32 s{sT1}, s{sT0}, {k}
s_cmp_ge_u32 s{sT1}, 7
s_cselect_b32 s{sT2}, 7, 0
s_sub_u32 s{sT1}, s{sT1}, s{sT2}
s_lshl_b32 s{sT1}, s{sT1}, 10
v_add_u32 v{vM0+k}, s{sT1}, v{vL16}""")
    a(f"""
v_lshrrev_b32 v40, 4, v1
v_and_b32 v41, 15, v1
v_lshrrev_b32 v42, 3, v1
v_and_b32 v43, 7, v1
v_mov_b32 v{vIdx}, 0x44444444
v_mov_b32 v44, 0xeeeeeeee
v_and_b32 v45, 2, v1
v_cmp_ne_u32 vcc, 0, v45
s_nop 1
v_cndmask_b32 v{vIdx}, v{vIdx}, v44, vcc
v_mov_b32 v{vZ}, 0
v_mov_b32 v{vStep}, 1
v_mov_b32 v{vPoi}, -1
; v46 = (4*(i>>1) + (i&1))*16 ; v47 = v46 + (q&1)*32
v_lshrrev_b32 v44, 1, v42
v_lshlrev_b32 v46, 6, v44
v_and_b32 v45, 1, v42
v_lshl_add_u32 v46, v45, 4, v46
v_and_b32 v45, 1, v43
v_lshl_add_u32 v47, v45, 5, v46
s_lshl_b32 s{sT1}, s{sW}, 4
v_add_u32 v44, s{sT1}, v41
v_subrev_u32 v45, 56, v44
v_cmp_gt_u32 vcc, 56, v44
s_nop 1
v_cndmask_b32 v44, v45, v44, vcc
v_lshlrev_b32 v44, 2, v44
s_lshl_b32 s{sT1}, s{sCU}, 8
v_add_u32 v{vFR}, s{sT1}, v44
s_mov_b32 s{sS_}, 0
s_mov_b32 s{sBUD}, 0x100000
s_mov_b32 s{sMc}, {MR}
s_mov_b32 s{sMn}, {MR+8192}
s_mov_b32 s{sP}, {PR}
s_mov_b32 s{sPp}, {PR+16384}
s_mov_b32 s{sFM}, {FLGM}
s_mov_b32 s{sFP}, {FLGP}
s_sub_u32 s{sB}, s{sCU}, 16""")
    for k in range(7):
        a(f"v_lshlrev_b32 v{48+k}, 1, v{vM0+k}\nv_sub_u32 v{48+k}, v{48+k}, v{vL16}")

def setup_A(a):
    a(f"""
v_lshlrev_b32 v44, 6, v40
v_bfe_u32 v45, v41, 2, 1
v_lshl_add_u32 v44, v45, 5, v44
v_bfe_u32 v45, v41, 3, 1
v_lshl_add_u32 v44, v45, 2, v44
v_bfe_u32 v45, v41, 1, 1
v_lshl_add_u32 v44, v45, 3, v44
v_and_b32 v45, 1, v41
v_lshl_add_u32 v44, v45, 1, v44
s_mul_i32 s{sT1}, s{sW}, 1792
s_add_u32 s{sT1}, s{sT1}, {LT}
v_add_u32 v{vTW}, s{sT1}, v44
v_lshlrev_b32 v44, 7, v40
v_lshl_add_u32 v44, v41, 2, v44
v_add_u32 v{vSW}, {LS+1024}, v44
v_lshlrev_b32 v44, 8, v40
v_lshrrev_b32 v45, 1, v41
v_lshl_add_u32 v44, v45, 4, v44
v_and_b32 v45, 1, v41
v_lshl_add_u32 v44, v45, 2, v44
s_lshl_b32 s{sT1}, s{sW}, 3
s_add_u32 s{sT1}, s{sT1}, {LS}
v_add_u32 v44, s{sT1}, v44
s_cmp_lt_u32 s{sW}, 2
s_cselect_b64 vcc, -1, 0
v_cndmask_b32 v{vSW}, v{vSW}, v44, vcc
v_add_u32 v{vSX}, {LS}, v{vL16}
v_lshlrev_b32 v44, 3, v1
v_add_u32 v{vSM}, {LS+1024}, v44
v_lshrrev_b32 v44, 1, v40
v_lshlrev_b32 v44, 8, v44
v_bfe_u32 v45, v41, 1, 2
v_lshl_add_u32 v44, v45, 6, v44
v_and_b32 v45, 1, v40
v_lshl_add_u32 v44, v45, 5, v44
v_and_b32 v45, 1, v41
v_lshl_add_u32 v{vKM}, v45, 4, v44
s_mul_i32 s{sT1}, s{sW}, {TILE_B}
s_add_u32 s{sT1}, s{sT1}, {LA}
v_add_u32 v{vAL}, s{sT1}, v{vL16}
; vP0 = (h>>2)*4096 + (h&3)*512 + v47 + (2*((q>>1)&1) + (q>>2))*4
v_bfe_u32 v45, v43, 1, 1
v_lshl_add_u32 v44, v45, 3, v47
v_lshrrev_b32 v45, 2, v43
v_lshl_add_u32 v44, v45, 2, v44
s_lshr_b32 s{sT1}, s{sCU}, 2
s_lshl_b32 s{sT1}, s{sT1}, 12
s_and_b32 s{sT0}, s{sCU}, 3
s_lshl_b32 s{sT2}, s{sT0}, 9
s_add_u32 s{sT2}, s{sT2}, s{sT1}
v_add_u32 v{vP0}, s{sT2}, v44
; vPM = (h>>2)*4096 + 2048 + (q>>1)*256 + v46 + (h&1)*32 + (2*(q&1) + ((h>>1)&1))*4   (q<4)
v_lshrrev_b32 v45, 1, v43
v_lshl_add_u32 v44, v45, 8, v46
v_and_b32 v45, 1, v43
v_lshl_add_u32 v44, v45, 3, v44
s_and_b32 s{sT2}, s{sT0}, 1
s_lshl_b32 s{sT2}, s{sT2}, 5
s_add_u32 s{sT1}, s{sT1}, s{sT2}
s_lshr_b32 s{sT2}, s{sT0}, 1
s_lshl_b32 s{sT2}, s{sT2}, 2
s_add_u32 s{sT1}, s{sT1}, s{sT2}
s_add_u32 s{sT1}, s{sT1}, 2048
v_add_u32 v44, s{sT1}, v44""")
    sel(a, vPM, 4, 43, 44)
    a(f"""v_cndmask_b32 v{vMask}, 0, 1.0, vcc
v_lshlrev_b32 v44, 7, v1
s_lshl_b32 s{sT1}, s{sCU}, 2
v_add_u32 v44, s{sT1}, v44""")
    sel(a, vFW, 14, 1, 44)
    a(f"""s_cmp_eq_u32 s{sW}, 1
s_cselect_b32 s{sT1}, 14336, 0
s_add_u32 s{sX}, s{sT1}, {XREC}
s_add_u32 s{sX1}, s{sX}, 4096
s_add_u32 s{sX2}, s{sX}, 8192
s_add_u32 s{sX3}, s{sX}, 12288""")
    a(f"""s_mul_i32 s{sT0}, s{sCU}, {28*TILE_B}
s_mul_i32 s{sT1}, s{sW}, {7*TILE_B}
s_add_u32 s{sT0}, s{sT0}, s{sT1}
s_add_u32 s{sT0}, s{sT0}, {ACAN}
s_mul_i32 s{sT2}, s{sW}, {TILE_B}
s_add_u32 s{sT2}, s{sT2}, {LA}""")
    for t in range(7):
        for k in range(7):
            if t < 6:
                p, b = ureg(t*7 + k, 176)
                a(f"buffer_load_dwordx4 {p}[{b}:{b+3}], v{48+k}, {WS}, s{sT0} offen")
                a(f"buffer_load_dwordx4 {p}[{b+4}:{b+7}], v{48+k}, {WS}, s{sT0} offen offset:1024")
            else:
                a(f"s_add_u32 m0, s{sT2}, {k*2048}\ns_nop 0")
                a(f"buffer_load_dwordx4 v{48+k}, {WS}, s{sT0} offen lds")
                a(f"buffer_load_dwordx4 v{48+k}, {WS}, s{sT0} offen offset:1024 lds")
        a(f"s_add_u32 s{sT0}, s{sT0}, {TILE_B}\ns_waitcnt vmcnt(30)")
    zero(a, (TACC, 28), (SACC, 4))
    a("s_waitcnt vmcnt(0)")

def setup_B(a):
    a(f"""
s_lshl_b32 s{sT1}, s{sW}, 12
v_add_u32 v{vPx}, s{sT1}, v{vL16}
v_and_b32 v44, 511, v{vL16}
s_add_u32 s{sT1}, s{sT1}, 2048
v_add_u32 v{vPm}, s{sT1}, v44
v_lshlrev_b32 v44, 7, v40
v_lshl_add_u32 v44, v41, 2, v44
s_lshl_b32 s{sT1}, s{sW}, 9
s_add_u32 s{sT1}, s{sT1}, {LR}
v_add_u32 v{vRW}, s{sT1}, v44
s_and_b32 s{sT0}, s{sW}, 1
s_lshl_b32 s{sT1}, s{sT0}, 11
s_add_u32 s{sT1}, s{sT1}, {LR}
v_lshlrev_b32 v44, 3, v1
v_add_u32 v{vRR}, s{sT1}, v44
v_lshrrev_b32 v45, 1, v43
v_lshl_add_u32 v44, v45, 2, v47
s_lshl_b32 s{sT1}, s{sB}, 1
s_add_u32 s{sT1}, s{sT1}, s{sT0}
s_lshl_b32 s{sT1}, s{sT1}, 8
v_add_u32 v{vMP}, s{sT1}, v44
s_lshl_b32 s{sT1}, s{sW}, 15
s_add_u32 s{sT1}, s{sT1}, {LB}
v_add_u32 v{vBL}, s{sT1}, v{vL16}
v_lshlrev_b32 v44, 7, v1
s_lshl_b32 s{sT1}, s{sB}, 11
v_add_u32 v44, s{sT1}, v44""")
    sel(a, vTch, 16, 1, 44)
    a(f"""s_cmp_eq_u32 s{sB}, 0
s_cselect_b32 s{sT1}, 0, {OOB}
v_add_u32 v{vMA0}, s{sT1}, v{vM0}
v_add_u32 v{vMA1}, s{sT1}, v{vM0+1}
v_lshlrev_b32 v44, 8, v1
s_lshl_b32 s{sT1}, s{sB}, 2
s_add_u32 s{sT1}, s{sT1}, s{sW}
s_lshl_b32 s{sT1}, s{sT1}, 2
v_add_u32 v44, s{sT1}, v44""")
    sel(a, vFW, 30, 1, 44)
    a(f"""; vFRP = b*128 + (4w + (lane&3))*4
v_and_b32 v44, 3, v1
v_lshlrev_b32 v44, 2, v44
s_lshl_b32 s{sT1}, s{sB}, 7
s_lshl_b32 s{sT2}, s{sW}, 4
s_add_u32 s{sT1}, s{sT1}, s{sT2}
v_add_u32 v{vFRP}, s{sT1}, v44
s_lshl_b32 s{sT0}, s{sB}, 15
s_add_u32 s{sVO}, s{sT0}, {VOOP}
s_add_u32 s{sVO2}, s{sVO}, 16384
s_lshl_b32 s{sT0}, s{sB}, 13
s_lshl_b32 s{sT1}, s{sW}, 10
s_add_u32 s{sT0}, s{sT0}, s{sT1}
s_add_u32 s{sVM}, s{sT0}, {VOMEM}
s_mov_b32 s{sVMp}, {OOB}
s_mov_b32 s{sMA}, {MEMALL}
s_mov_b32 s{sCN}, {CNT}
s_mov_b32 s{sX}, {XREC+28672}
s_lshl_b32 s{sT2}, s{sW}, 15
s_add_u32 s{sT2}, s{sT2}, {LB}""")
    for t in range(8):
        a(f"""s_mul_i32 s{sT0}, s{sB}, {32*TILE_B}
s_mul_i32 s{sT1}, s{sW}, {4*TILE_B}
s_add_u32 s{sT0}, s{sT0}, s{sT1}
s_add_u32 s{sT0}, s{sT0}, {BCAN + ((t >> 2)*16 + (t & 3))*TILE_B}""")
        for k in range(7):
            u = k*8 + t
            if u < 40:
                p, b = ureg(u, 192)
                a(f"buffer_load_dwordx4 {p}[{b}:{b+3}], v{48+k}, {WS}, s{sT0} offen")
                a(f"buffer_load_dwordx4 {p}[{b+4}:{b+7}], v{48+k}, {WS}, s{sT0} offen offset:1024")
            else:
                a(f"s_add_u32 m0, s{sT2}, {(u-40)*2048}\ns_nop 0")
                a(f"buffer_load_dwordx4 v{48+k}, {WS}, s{sT0} offen lds")
                a(f"buffer_load_dwordx4 v{48+k}, {WS}, s{sT0} offen offset:1024 lds")
        a("s_waitcnt vmcnt(30)")
    zero(a, (VACC, 32), (VOM, 16), (PACC, 8))
    a("s_waitcnt vmcnt(0)")

def retry(a, Lretry, Lpoll, Laccept):
    pre = f"s_add_u32 s{82 + 'spm'.index(Lretry[1])}, s{82 + 'spm'.index(Lretry[1])}, 1" if STAMP else ""
    a(f"""{Lretry}:
{pre}
s_sub_u32 s{sBUD}, s{sBUD}, 1
s_cbranch_scc0 {Lpoll}
s_mov_b32 s{sBUD}, 0
s_branch {Laccept}""")

def flag_wait(a, vaddr, soff):
    Lf, Lg = a.lab("Lfp"), a.lab("Lfg")
    for i in range(3):
        a(f"buffer_load_dword v{vF0+i}, v{vaddr}, {WS}, s{soff} offen sc1")
        if i < 2: a("s_nop 15")
    a(f"{Lf}:")
    for i in range(3):
        a(f"""s_waitcnt vmcnt(2)
v_cmp_gt_u32 vcc, v{vStep}, v{vF0+i}
s_cbranch_vccz {Lg}
buffer_load_dword v{vF0+i}, v{vaddr}, {WS}, s{soff} offen sc1""")
    a(f"""s_sub_u32 s{sBUD}, s{sBUD}, 1
s_cbranch_scc0 {Lf}
s_mov_b32 s{sBUD}, 0
{Lg}:""")

def mem_poll(a, cold, spec, acc):
    Lp, Lr, La, Lr2, La2 = (a.lab(x) for x in ("Lmp", "Lmr", "Lma", "Lmr2", "Lma2"))
    m = MEMR
    a(f"""{Lp}:
buffer_load_dwordx4 {vr(m,4)}, v{vM0}, {WS}, s{sMc} offen sc1
buffer_load_dwordx4 {vr(m+4,4)}, v{vM0+1}, {WS}, s{sMc} offen sc1
s_waitcnt vmcnt(0)
v_max_u32 v{vT}, v{m+3}, v{m+7}
v_cmp_eq_u32 vcc, -1, v{vT}
s_cbranch_vccnz {Lr}
{La}:""")
    st(a, 1)
    a(f"""ds_write_b128 v{vM0}, {vr(m,4)} offset:{LM}
ds_write_b128 v{vM0+1}, {vr(m+4,4)} offset:{LM}""")
    chk = [f"v_max3_u32 v{vT}, v{m}, v{m+1}, v{m+2}", f"v_max3_u32 v{vT}, v{vT}, v{m+4}, v{m+5}",
           f"v_max_u32 v{vT}, v{vT}, v{m+6}\nv_cmp_eq_u32 vcc, -1, v{vT}"]
    for i in range(4):
        if i < len(spec): spec[i]()
        if i < 3: a(chk[i])
    a(f"s_cbranch_vccnz {Lr2}\n{La2}:\ns_waitcnt lgkmcnt(0)\ns_barrier")
    def c():
        retry(a, Lr, Lp, La)
        a(f"{Lr2}:\ns_sub_u32 s{sBUD}, s{sBUD}, 1\ns_cbranch_scc1 {Lr2}x\ns_nop 15")
        if spec: zero(a, acc)
        a(f"s_branch {Lp}\n{Lr2}x:\ns_mov_b32 s{sBUD}, 0\ns_branch {La2}")
    cold.append(c)

def xs_loads(a):
    for idx in range(14):
        so = (sX, sX1, sX2, sX3)[idx >> 2]
        a(f"buffer_load_dwordx4 {vr(XOP+4*idx,4)}, v{vL16}, {WS}, s{so} offen offset:{(idx & 3)*1024}")

def loop_A(a, role, SC):
    cold = []
    Ltop = a.lab("Ltop")
    m = MEMR
    def a6(lg, k):
        b = ASTG[k & 1]
        lg.op(f"ds_read_b128 {vr(b,4)}, v{vAL} offset:{k*2048}")
        lg.op(f"ds_read_b128 {vr(b+4,4)}, v{vAL} offset:{k*2048+1024}", f"a{k}")
    lg = LG(a)
    if role == 'x': xs_loads(a)
    a6(lg, 0); a6(lg, 1); lg.all()
    a(f"{Ltop}:")
    st(a, 0)
    mem_poll(a, cold, [lambda t=t: smf(a, TACC+4*t, m, Aop(t, 0)) for t in range(4)], (TACC, 16))
    st(a, 2)
    def rdm(k): lg.op(f"ds_read_b128 {vr(m+4*k,4)}, v{vM0+k} offset:{LM}", f"m{k}")
    def a6h(k, h):
        b = ASTG[k & 1] + 4*h
        lg.op(f"ds_read_b128 {vr(b,4)}, v{vAL} offset:{k*2048+1024*h}", f"a{k}" if h else None)
    def epi(t, part):
        b = TACC + 4*t
        if part == 0: a(f"v_pk_add_f32 {vr(b,2)}, {vr(b,2)}, {vr(b+2,2)}")
        if part == 1: a(f"v_cvt_pk_bf16_f32 v{b+2}, v{b}, v{b+1}")
        if part == 2: lg.op(f"ds_write_b16 v{vTW}, v{b+2} offset:{256*t}")
        if part == 3: lg.op(f"ds_write_b16_d16_hi v{vTW}, v{b+2} offset:{256*t+16}")
    fill = []
    if role == 'f':
        fill = [f"buffer_store_dword v{vPoi}, v{vP0}, {WS}, s{sPp} offen {SC}",
                f"buffer_store_dword v{vPoi}, v{vP0}, {WS}, s{sPp} offen offset:256 {SC}",
                f"buffer_store_dword v{vPoi}, v{vPM}, {WS}, s{sPp} offen {SC}"]
    km = [f"ds_read_b128 {vr(XOP+4*idx,4)}, v{vKM} offset:{LM+idx*512}" for idx in range(14)] if role == 'm' else []
    rdm(2)
    smf(a, TACC+24, m, vr(ASTG[0], 8)); rdm(3)
    smf(a, TACC+24, m+4, vr(ASTG[1], 8)); rdm(4)
    smf(a, TACC+16, m, Aop(4, 0)); rdm(5)
    smf(a, TACC+20, m, Aop(5, 0)); rdm(6)
    pre = [lambda: a6h(2, 0), lambda: a6h(2, 1), lambda: a6h(3, 0), lambda: a6h(3, 1)]
    for t in range(6):
        smf(a, TACC+4*t, m+4, Aop(t, 1))
        if pre: pre.pop(0)()
        elif fill: a(fill.pop(0))
        elif km: lg.op(km.pop(0))
    lg.wait("m6")
    for t in range(6):
        for k in range(2, 7):
            smf(a, TACC+4*t, m+4*k, Aop(t, k))
            if t >= 1 and k <= 3:
                if t + 3 < 7: a6h(t+3, k-2)
                else: a("s_nop 0")
                if t >= 2 and k == 2: epi(t-2, 3)
                elif km: lg.op(km.pop(0))
                elif k == 2: a("s_nop 0")
            if t >= 1 and k >= 4: epi(t-1, k-4)
            if t == 5 and k >= 5: epi(6, k-5)
            if t == 0:
                if fill: a(fill.pop(0))
                elif km: lg.op(km.pop(0))
            elif km and k == 4: lg.op(km.pop(0))
        if t < 5:
            lg.wait(f"a{t+2}")
            smf(a, TACC+24, m+4*(t+2), vr(ASTG[t & 1], 8))
    st(a, 3)
    epi(4, 3); epi(6, 2); epi(6, 3)
    a("s_nop 2")
    for p in range(4): epi(5, p)
    assert not km
    lg.all(); a("s_barrier")
    st(a, 4)
    upd = f"""s_add_u32 s{sS_}, s{sS_}, 1
s_xor_b32 s{sMc}, s{sMc}, 8192
s_xor_b32 s{sP}, s{sP}, 16384
s_xor_b32 s{sPp}, s{sPp}, 16384"""
    xadv = "\n".join(f"s_add_u32 s{r}, s{r}, {0 if SAME else 28672}" for r in (sX, sX1, sX2, sX3))
    if role != 'f':
        for k in range(7): lg.op(f"ds_read_b128 {vr(TACC+4*k,4)}, v{vL16} offset:{LT+1024*k}", f"t{k}")
        for k in range(7):
            lg.wait(f"t{k}")
            smf(a, SACC, TACC+4*k, vr(XOP+8*k, 8))
        a(f"""s_nop 7
v_pk_add_f32 {vr(SACC,2)}, {vr(SACC,2)}, {vr(SACC+2,2)}
ds_write2_b32 v{vSW}, v{SACC}, v{SACC+1} offset0:0 offset1:{32 if role == 'x' else 16}
s_waitcnt lgkmcnt(0)
s_barrier""")
        st(a, 5)
        zero(a, (TACC, 28), (SACC, 4))
        a6(lg, 0); a6(lg, 1); lg.all()
        a(xadv)
        a("s_barrier")
        st(a, 6); st(a, 7)
        a(f"s_cmp_eq_u32 s{sS_}, 62\ns_cbranch_scc1 Lrec_done")
        if role == 'x': xs_loads(a)
    else:
        zero(a, (TACC, 28))
        a6(lg, 0); a6(lg, 1); lg.all()
        S = SMX; E = SMX + 8
        flag = f"buffer_store_dword v{vStep}, v{vFW}, {WS}, s{sFP} offen {SC}"
        if OPT['fp'] == 0: a(flag)
        a("s_barrier")
        st(a, 5)
        a(f"""ds_read_b128 {vr(S,4)}, v{vSX}
ds_read_b64 {vr(S+4,2)}, v{vSM}""")
        if OPT['fp'] == 1: a(flag)
        a(f"""s_waitcnt lgkmcnt(1)
v_max3_f32 v{S+6}, v{S}, v{S+1}, v{S+2}
s_waitcnt lgkmcnt(0)""")
        st(a, 6)
        if OPT['fp'] == 2: a(flag)
        a(f"""v_max3_f32 v{S+6}, v{S+6}, v{S+3}, v{S+4}
v_max_f32 v{S+6}, v{S+6}, v{S+5}
s_nop 1
v_max_f32_dpp v{S+6}, v{S+6}, v{S+6} quad_perm:[1,0,3,2] row_mask:0xf bank_mask:0xf
s_nop 1
v_max_f32_dpp v{S+6}, v{S+6}, v{S+6} quad_perm:[2,3,0,1] row_mask:0xf bank_mask:0xf
s_nop 1
v_max_f32_dpp v{S+6}, v{S+6}, v{S+6} row_half_mirror row_mask:0xf bank_mask:0xf""")
        if OPT['fp'] == 3: a(flag)
        a(f"""v_pk_add_f32 {vr(S,2)}, {vr(S,2)}, {vr(S+6,2)} op_sel_hi:[1,0] neg_lo:[0,1] neg_hi:[0,1]
v_pk_add_f32 {vr(S+2,2)}, {vr(S+2,2)}, {vr(S+6,2)} op_sel_hi:[1,0] neg_lo:[0,1] neg_hi:[0,1]
v_pk_add_f32 {vr(S+4,2)}, {vr(S+4,2)}, {vr(S+6,2)} op_sel_hi:[1,0] neg_lo:[0,1] neg_hi:[0,1]
v_exp_f32 v{S}, v{S}
v_exp_f32 v{S+1}, v{S+1}
v_exp_f32 v{S+2}, v{S+2}
v_exp_f32 v{S+3}, v{S+3}
v_exp_f32 v{S+4}, v{S+4}
v_exp_f32 v{S+5}, v{S+5}
v_pk_add_f32 {vr(E,2)}, {vr(S,2)}, {vr(S+2,2)}
v_add_f32 v{E+2}, v{S+4}, v{S+5}
v_add_f32 v{E}, v{E}, v{E+1}
v_fma_f32 v{E}, v{E+2}, v{vMask}, v{E}
s_nop 1
v_add_f32_dpp v{E}, v{E}, v{E} quad_perm:[1,0,3,2] row_mask:0xf bank_mask:0xf
s_nop 1
v_add_f32_dpp v{E}, v{E}, v{E} quad_perm:[2,3,0,1] row_mask:0xf bank_mask:0xf
s_nop 1
v_add_f32_dpp v{E}, v{E}, v{E} row_half_mirror row_mask:0xf bank_mask:0xf
v_rcp_f32 v{E}, v{E}
s_nop 0
v_pk_mul_f32 {vr(S,2)}, {vr(S,2)}, {vr(E,2)} op_sel_hi:[1,0]
v_pk_mul_f32 {vr(S+2,2)}, {vr(S+2,2)}, {vr(E,2)} op_sel_hi:[1,0]
v_pk_mul_f32 {vr(S+4,2)}, {vr(S+4,2)}, {vr(E,2)} op_sel_hi:[1,0]
v_cvt_pk_bf16_f32 v{S}, v{S}, v{S+1}
buffer_store_dword v{S}, v{vP0}, {WS}, s{sP} offen {SC}
v_cvt_pk_bf16_f32 v{S+2}, v{S+2}, v{S+3}
buffer_store_dword v{S+2}, v{vP0}, {WS}, s{sP} offen offset:256 {SC}
v_cvt_pk_bf16_f32 v{S+4}, v{S+4}, v{S+5}
buffer_store_dword v{S+4}, v{vPM}, {WS}, s{sP} offen {SC}""")
        st(a, 7)
        a("s_barrier")
        a(f"s_cmp_eq_u32 s{sS_}, 62\ns_cbranch_scc1 Lrec_done")
    a(upd)
    st_acc(a, range(8))
    flag_wait(a, vFR, sFM)
    a(f"v_add_u32 v{vStep}, 1, v{vStep}\ns_branch {Ltop}")
    for c in cold: c()

def cnt_check(a, cold):
    Lok, Lr = a.lab("Lco"), a.lab("Lcr")
    a(f"v_cmp_gt_u32 vcc, 16, v{vCnt}\ns_cbranch_vccnz {Lr}\n{Lok}:")
    def c():
        a(f"""{Lr}:
buffer_load_dword v{vCnt}, v{vZ}, {WS}, s{sCN} offen sc1
s_waitcnt vmcnt(0)
v_cmp_gt_u32 vcc, 16, v{vCnt}
s_cbranch_vccz {Lok}
s_sleep 4
s_sub_u32 s{sBUD}, s{sBUD}, 1
s_cbranch_scc0 {Lr}
s_mov_b32 s{sBUD}, 0
s_branch {Lok}""")
    cold.append(c)

def vomem_gemm(a, w, blk1, blk2):
    m = MEMR
    lg = LG(a)
    for k in (5, 2, 3, 4, 6): lg.op(f"ds_read_b128 {vr(m+4*k,4)}, v{vM0+k} offset:{LM}", f"m{k}")
    def rd(u, h):
        b = BSTG[u % 4] + 4*h
        lg.op(f"ds_read_b128 {vr(b,4)}, v{vBL} offset:{(u-40)*2048+1024*h}", f"b{u}" if h else None)
    order = list(range(8))
    r, l = 8, 40
    while r < 40 or l < 56:
        for _ in range(2):
            if r < 40: order.append(r); r += 1
        if l < 56: order.append(l); l += 1
    pend = [(u, h) for u in range(40, 44) for h in range(2)]
    pos = {OPT['s1']*w: blk1, OPT['o2'] + OPT['s2']*w: blk2}
    for i, u in enumerate(order):
        k, t = u >> 3, u & 7
        if k >= 2: lg.wait(f"m{k}")
        if u >= 40: lg.wait(f"b{u}")
        smf(a, VACC+4*t, m+4*k, Bop(t, k) if u < 40 else vr(BSTG[u % 4], 8))
        if u >= 40 and u + 4 < 56: pend += [(u+4, 0), (u+4, 1)]
        if pend: rd(*pend.pop(0))
        for x in pos.get(i, []): a(x)
    a("s_nop 7")
    for t in range(8):
        b = VACC + 4*t
        a(f"v_pk_add_f32 {vr(b,2)}, {vr(b,2)}, {vr(b+2,2)}")
    for t in range(8):
        b = VACC + 4*t
        a(f"v_cvt_pk_bf16_f32 v{VOM + 8*(t >> 2) + (t & 3)}, v{b}, v{b+1}")

def loop_B(a, w, SC):
    role = 'f' if w >= 2 else 'n'
    cold = []
    Ltop = a.lab("Ltop")
    m = MEMR
    a(f"buffer_load_dword v{vCnt}, v{vZ}, {WS}, s{sCN} offen sc1")
    a(f"{Ltop}:")
    st(a, 0)
    mem_poll(a, cold, [], None)
    st(a, 2)
    cnt_check(a, cold)
    def vmst(so): return [f"buffer_store_dwordx4 {vr(VOM,4)}, v{vL16}, {WS}, s{so} offen",
                          f"s_add_u32 s{sT0}, s{so}, 4096\nbuffer_store_dwordx4 {vr(VOM+8,4)}, v{vL16}, {WS}, s{sT0} offen"]
    def skip_unless(cond, body):
        L = a.lab("Lsu")
        return [f"{cond}\ns_cbranch_scc0 {L}"] + body + [f"{L}:"]
    def mall(): return skip_unless(f"s_cmp_eq_u32 s{sB}, 0", [f"buffer_store_dwordx4 {vr(m,4)}, v{vM0}, {WS}, s{sMA} offen sc1",
                         f"buffer_store_dwordx4 {vr(m+4,4)}, v{vM0+1}, {WS}, s{sMA} offen sc1"] +
                         ([f"s_mov_b32 s{sT0}, {CNT+0x1080}\nbuffer_store_dword v{vStep}, v{vZ}, {WS}, s{sT0} offen sc1"] if w == 3 else []))
    def vol(ct): return [f"buffer_load_dwordx4 {vr(VOX+16*ct+4*hh,4)}, v{vPx}, {WS}, s{(sVO, sVO2)[ct]} offen offset:{hh*1024} sc1" for hh in range(4)]
    class Lazy(list):
        def __init__(s, f): s.f = f
        def __iter__(s): return iter(s.f())
        def __bool__(s): return True
    def cntl(): return skip_unless(f"s_and_b32 s{sT0}, s{sS_}, 3\ns_cmp_eq_u32 s{sT0}, 3",
                       [f"s_add_u32 s{sCN}, s{sCN}, 128\nbuffer_load_dword v{vCnt}, v{vZ}, {WS}, s{sCN} offen sc1"])
    vomem_gemm(a, w, vol(0) + cntl() + mall(), vol(1) + vmst(sVMp))
    st(a, 3)
    if STAMP and OPT['vw']: a("s_waitcnt vmcnt(0)")
    st(a, 4)
    flag_wait(a, vFRP, sFP)
    st(a, 5)
    Lp, Lr, La, Lr2, La2 = (a.lab(x) for x in ("Lpp", "Lpr", "Lpa", "Lpr2", "Lpa2"))
    P = PRG
    flag = f"buffer_store_dword v{vStep}, v{vFW}, {WS}, s{sFM} offen {SC}"
    a(f"""{Lp}:
buffer_load_dwordx4 {vr(P,4)}, v{vPx}, {WS}, s{sP} offen sc1
buffer_load_dwordx4 {vr(P+4,4)}, v{vPx}, {WS}, s{sP} offen offset:1024 sc1
buffer_load_dwordx4 {vr(P+8,4)}, v{vPm}, {WS}, s{sP} offen sc1
""")
    for i in range(3):
        a(f"s_waitcnt vmcnt({2-i})")
        if i == 2: st(a, 6)
        if i == 2 and OPT['fm'] == 0: a(flag)
        for ct in range(2):
            smf(a, PACC+4*ct, P+4*i, vr(VOX+16*ct+8*i, 8) if i < 2 else vr(VOM+8*ct, 8))
    if OPT['fm'] == 1: a(flag)
    a(f"""s_nop 6
v_pk_add_f32 {vr(PACC,2)}, {vr(PACC,2)}, {vr(PACC+2,2)}
v_pk_add_f32 {vr(PACC+4,2)}, {vr(PACC+4,2)}, {vr(PACC+6,2)}
v_cmp_u_f32 vcc, v{PACC}, v{PACC+1}
s_cbranch_vccnz {Lr2}
{La2}:
ds_write2_b32 v{vRW}, v{PACC}, v{PACC+1} offset0:0 offset1:16
v_add_u32 v{vT}, 2048, v{vRW}
ds_write2_b32 v{vT}, v{PACC+4}, v{PACC+5} offset0:0 offset1:16""")
    if OPT['fm'] == 2: a(flag)
    a("s_waitcnt lgkmcnt(0)\ns_barrier")
    if OPT['fm'] == 3: a(flag)
    def c():
        a(f"{Lr2}:\ns_sub_u32 s{sBUD}, s{sBUD}, 1\ns_cbranch_scc1 {Lr2}x")
        if STAMP: a("s_add_u32 s83, s83, 1")
        zero(a, (PACC, 8))
        a(f"s_branch {Lp}\n{Lr2}x:\ns_mov_b32 s{sBUD}, 0\ns_branch {La2}")
    cold.append(c)
    st(a, 7)
    if role == 'f':
        R = BSTG[0]
        a(f"""ds_read2st64_b64 {vr(R,4)}, v{vRR} offset0:0 offset1:1
ds_read2st64_b64 {vr(R+4,4)}, v{vRR} offset0:2 offset1:3
s_waitcnt lgkmcnt(1)
v_pk_add_f32 {vr(R,2)}, {vr(R,2)}, {vr(R+2,2)}
s_waitcnt lgkmcnt(0)
v_pk_add_f32 {vr(R+4,2)}, {vr(R+4,2)}, {vr(R+6,2)}
v_pk_add_f32 {vr(R,2)}, {vr(R,2)}, {vr(R+4,2)}
v_cvt_pk_bf16_f32 v{R}, v{R}, v{R+1}
buffer_store_dword v{R}, v{vMP}, {WS}, s{sMn} offen {SC}
buffer_store_dword v{vPoi}, v{vMP}, {WS}, s{sMc} offen {SC}""")
    st(a, 8)
    zero(a, (PACC, 8), (VACC, 32))
    a(f"""s_add_u32 s{sS_}, s{sS_}, 1
s_xor_b32 s{sMc}, s{sMc}, 8192
s_xor_b32 s{sMn}, s{sMn}, 8192
s_xor_b32 s{sP}, s{sP}, 16384
s_add_u32 s{sVO}, s{sVO}, {0 if SAME else 28*16384}
s_add_u32 s{sVO2}, s{sVO2}, {0 if SAME else 28*16384}
s_mov_b32 s{sVMp}, s{sVM}
s_add_u32 s{sVM}, s{sVM}, {28*4096}
s_add_u32 s{sMA}, s{sMA}, 8192
s_add_u32 s{sX}, s{sX}, {0 if SAME else 28672}""")
    st_acc(a, range(9))
    flag_wait(a, vFR, sFM)
    a(f"v_add_u32 v{vStep}, 1, v{vStep}\ns_cmp_lt_u32 s{sS_}, 63\ns_cbranch_scc1 {Ltop}")
    sv = globals()['STAMP']; globals()['STAMP'] = False
    mem_poll(a, cold, [], None)
    globals()['STAMP'] = sv
    vomem_gemm(a, w, mall(), vmst(sVMp))
    for x in vmst(sVM): a(x)
    a("s_branch Lrec_done")
    for c in cold: c()

def loop_PF(a):
    Ll, Lw, Lc, Lgo, Lgo2 = (a.lab(x) for x in ("Lpf", "Lpfw", "Lpfc", "Lpfg", "Lpfg2"))
    a(f"""s_sub_u32 s{sT0}, s{sCU}, 30
s_lshl_b32 s{sT0}, s{sT0}, 2
s_add_u32 s{sT0}, s{sT0}, s{sW}          ; pw 0..7
s_mov_b32 s{sVO}, {VOOP+16384}
s_mov_b32 s{sVO2}, {28*16384}
s_mov_b32 s{sT1}, 32768
s_cmp_eq_u32 s{sT0}, 7
s_cselect_b32 s{sVO}, {XREC}, s{sVO}
s_cselect_b32 s{sVO2}, 28672, s{sVO2}
s_cselect_b32 s{sT1}, 16384, s{sT1}
s_cselect_b32 s{sT2}, 0, s{sT0}
s_lshl_b32 s{sT2}, s{sT2}, 16
s_add_u32 s{sVO}, s{sVO}, s{sT2}
v_lshlrev_b32 v21, 7, v1
v_add_u32 v22, 8192, v21
v_add_u32 v23, s{sT1}, v21
v_add_u32 v24, s{sT1}, v22
s_mov_b32 s{sCN}, {CNT}
{Ll}:
s_cmp_lt_u32 s{sS_}, {OPT['lead']+1}
s_cbranch_scc1 {Lgo}
s_sub_u32 s{sT0}, s{sS_}, {OPT['lead']}
{Lw}:
buffer_load_dword v25, v{vZ}, {WS}, s{sFM} offen sc1
s_waitcnt vmcnt(0)
v_cmp_gt_u32 vcc, s{sT0}, v25
s_cbranch_vccz {Lgo}
s_sleep 2
s_sub_u32 s{sBUD}, s{sBUD}, 1
s_cbranch_scc0 {Lw}
s_mov_b32 s{sBUD}, 0
{Lgo}:
s_and_b32 s{sT0}, s{sS_}, 3
s_cbranch_scc1 {Lgo2}
{Lc}:
buffer_load_dword v25, v{vZ}, {WS}, s{sCN} offen sc1
s_waitcnt vmcnt(0)
v_cmp_gt_u32 vcc, 16, v25
s_cbranch_vccz {Lc}x
s_sleep 4
s_sub_u32 s{sBUD}, s{sBUD}, 1
s_cbranch_scc0 {Lc}
s_mov_b32 s{sBUD}, 0
{Lc}x:
s_add_u32 s{sCN}, s{sCN}, 128
{Lgo2}:
buffer_load_dword v26, v21, {WS}, s{sVO} offen
buffer_load_dword v27, v22, {WS}, s{sVO} offen
buffer_load_dword v28, v23, {WS}, s{sVO} offen
buffer_load_dword v29, v24, {WS}, s{sVO} offen
s_add_u32 s{sVO}, s{sVO}, s{sVO2}
s_add_u32 s{sS_}, s{sS_}, 1
s_cmp_lt_u32 s{sS_}, 63
s_cbranch_scc1 {Ll}
s_branch Lend""")

def team(a, SCs, modewait=None):
    roles = ("Ax", "Am", "Af", "B0", "B1", "B2", "B3")
    L = {(k, i): a.lab("Lrole") for k in roles for i in range(len(SCs))}
    LBs, LPF = a.lab("LB"), a.lab("LPF")
    a(f"s_cmp_ge_u32 s{sCU}, 30\ns_cbranch_scc1 {LPF}")
    a(f"s_cmp_ge_u32 s{sCU}, 16\ns_cbranch_scc1 {LBs}")
    def pick(tab):
        if modewait: modewait(a)
        a("s_barrier"); a(PRE)
        for i in range(len(SCs)):
            Lnx = a.lab("Lnx")
            if len(SCs) > 1 and i == 0: a(f"s_cmp_eq_u32 s41, 1\ns_cbranch_scc0 {Lnx}")
            for w, k in tab[:-1]: a(f"s_cmp_eq_u32 s{sW}, {w}\ns_cbranch_scc1 {L[(k, i)]}")
            a(f"s_branch {L[(tab[-1][1], i)]}\n{Lnx}:")
    setup_A(a); pick([(2, "Am"), (3, "Af"), (0, "Ax")])
    a(f"{LBs}:")
    setup_B(a); pick([(1, "B1"), (2, "B2"), (3, "B3"), (0, "B0")])
    a(f"{LPF}:")
    loop_PF(a)
    for i, SC in enumerate(SCs):
        for k in roles:
            a(f".p2align 6\n{L[(k, i)]}:")
            loop_A(a, k[1], SC) if k[0] == 'A' else loop_B(a, int(k[1]), SC)

if __name__ == "__main__":
    import sys
    a = Asm()
    PRE = 's_memrealtime s[42:43]\ns_memtime s[46:47]\ns_waitcnt lgkmcnt(0)\ns_mov_b32 s70, s46'
    for x in sys.argv:
        if '=' in x: OPT[x.split('=')[0]] = int(x.split('=')[1])
    STAMP = 'stamp' in sys.argv; ABS = 'abs' in sys.argv; SAME = 'same' in sys.argv
    if 'warm' in sys.argv: a("; @launch kernel=warm_kernel grid=(11264,1,1) block=(256,1,1) lds=0")
    a("; @launch kernel=rec_kernel grid=(256,1,1) block=(256,1,1) lds=147456")
    a('.amdgcn_target "amdgcn-amd-amdhsa--gfx950"\n.text')
    kernel_begin(a, "rec_kernel")
    a("""s_cmp_ge_u32 s2, 256
s_cbranch_scc1 Lend
s_load_dwordx2 s[4:5], s[0:1], 96
s_load_dwordx2 s[6:7], s[0:1], 104
s_getreg_b32 s3, hwreg(HW_REG_XCC_ID)
s_and_b32 s3, s3, 15
s_waitcnt lgkmcnt(0)""")
    srd(a, 12, 4, 256); srd(a, 8, 6, 0x10000000)
    a(f"""s_cmp_lg_u32 s3, 0
s_cbranch_scc1 Lend
s_memrealtime s[40:41]
v_mov_b32 v1, 1
v_mov_b32 v2, 0
v_cmp_eq_u32 vcc, 0, v0
s_and_saveexec_b64 s[36:37], vcc
s_cbranch_execz Lskip
buffer_atomic_add v1, v2, s[12:15], 0 offen sc0
s_waitcnt vmcnt(0)
ds_write_b32 v2, v1
s_waitcnt lgkmcnt(0)
Lskip:
s_mov_b64 exec, s[36:37]
s_barrier
ds_read_b32 v1, v2
s_waitcnt lgkmcnt(0)
v_readfirstlane_b32 s{sCU}, v1
s_barrier
s_cmp_ge_u32 s{sCU}, 32
s_cbranch_scc1 Lend
""")
    setup(a)
    for i in range(13): a(f"s_mov_b32 s{72+i}, 0")
    team(a, ["sc1" if 'sc1' in sys.argv else ""])
    a(f"""Lrec_done:
s_memrealtime s[44:45]
s_memtime s[48:49]
s_waitcnt lgkmcnt(0)
s_lshl_b32 s36, s{sCU}, 2
s_add_u32 s36, s36, s{sW}
s_lshl_b32 s36, s36, 6
s_add_u32 s36, s36, 0x3480000
""" + "\n".join(f"v_mov_b32 v4, s{72+i}\nbuffer_store_dword v4, v{vZ}, {WS}, s36 offen offset:{4*i}" for i in range(13)) + f"""
v_mov_b32 v4, s{sBUD}
buffer_store_dword v4, v{vZ}, {WS}, s36 offen offset:60
s_cmp_lg_u32 s{sW}, 0
s_cbranch_scc1 Lend
s_cmp_lg_u32 s{sCU}, 16
s_cbranch_scc1 Lend
s_sub_u32 s44, s44, s42
s_sub_u32 s42, s42, s40
s_sub_u32 s48, s48, s46
v_mov_b32 v4, s42
v_mov_b32 v5, s44
v_mov_b32 v6, s48
v_mov_b32 v7, s{sBUD}
v_mov_b32 v3, 16
buffer_store_dwordx4 v[4:7], v3, s[12:15], 0 offen
Lend:
s_endpgm""")
    kernel_desc(a, "rec_kernel", 512, accum=256)
    kernel_begin(a, "warm_kernel")
    a("s_load_dwordx2 s[6:7], s[0:1], 104\ns_waitcnt lgkmcnt(0)")
    srd(a, 8, 6, 0x2C00000)
    a("""s_lshl_b32 s3, s2, 12
v_lshlrev_b32 v1, 4, v0
buffer_load_dwordx4 v[4:7], v1, s[8:11], s3 offen
s_waitcnt vmcnt(0)
buffer_store_dwordx4 v[4:7], v1, s[8:11], s3 offen
s_endpgm""")
    kernel_desc(a, "warm_kernel", 16)
    open(sys.argv[1], "w").write(a.text())
```

```python
import sys
from asmlib import *
from layout import *
import rec2, bulk, k1, k3
K2_LDS = 147456
def modewait(a, tmo=20000):
    Lp, Lg = a.lab("Lmw"), a.lab("Lmg")
    a(f"""s_mov_b32 s40, {tmo}
v_mov_b32 v40, 0
{Lp}:
buffer_load_dword v42, v40, s[12:15], 0 offen offset:4 sc1
s_waitcnt vmcnt(0)
v_readfirstlane_b32 s41, v42
s_cmp_lg_u32 s41, 0
s_cbranch_scc1 {Lg}
s_sleep 1
s_sub_u32 s40, s40, 1
s_cbranch_scc0 {Lp}
v_mov_b32 v42, 2
v_mov_b32 v43, 0
buffer_atomic_cmpswap v[42:43], v40, s[12:15], 0 offen offset:4
s_waitcnt vmcnt(0)
s_mov_b32 s40, {tmo}
s_branch {Lp}
{Lg}:""")
def gen_k2(a, force_slow=False, norec=False, nobulk=False):
    kernel_begin(a, "k2_kernel")
    a("""s_cmp_ge_u32 s2, 256
s_cbranch_scc1 Lend
s_load_dwordx2 s[4:5], s[0:1], 96
s_load_dwordx2 s[6:7], s[0:1], 104
s_getreg_b32 s3, hwreg(HW_REG_XCC_ID)
s_and_b32 s3, s3, 15
s_waitcnt lgkmcnt(0)""")
    srd(a, 12, 4, 256); srd(a, 8, 6, 0x10000000)
    tmo = 50 if force_slow else 20000
    a(f"""s_cmp_eq_u32 s3, {99 if (force_slow or norec) else 0}
s_cbranch_scc1 Lticket""")
    if norec: a("s_branch Lbulk")
    modewait(a, tmo)
    a(f"""s_cmp_eq_u32 s41, 1
s_cbranch_scc1 Lbulk
Lticket:
v_mov_b32 v1, 1
v_mov_b32 v2, 0
v_mov_b32 v3, 0x20000
v_cmp_eq_u32 vcc, 0, v0
s_and_saveexec_b64 s[36:37], vcc
s_cbranch_execz Lskip
buffer_atomic_add v1, v2, s[12:15], 0 offen sc0
s_waitcnt vmcnt(0)
ds_write_b32 v3, v1
v_cmp_eq_u32 vcc, 31, v1
s_cbranch_vccz Lnolast
v_mov_b32 v4, 1
v_mov_b32 v5, 0
buffer_atomic_cmpswap v[4:5], v2, s[12:15], 0 offen offset:4
Lnolast:
s_waitcnt lgkmcnt(0)
Lskip:
s_mov_b64 exec, s[36:37]
s_barrier
ds_read_b32 v1, v3
s_waitcnt lgkmcnt(0)
v_readfirstlane_b32 s{rec2.sCU}, v1
s_barrier
s_cmp_ge_u32 s{rec2.sCU}, 32
s_cbranch_scc0 Lteam
s_branch Lbulk
Lteam:""")
    rec2.setup(a)
    rec2.team(a, ["", "sc1"], lambda a: modewait(a, tmo))
    a("Lrec_done:\nLend:\ns_endpgm")
    a("Lbulk:")
    if nobulk: a("s_endpgm")
    bulk.bulk_setup(a)
    bulk.dispatcher(a, "Lend2")
    a("Lend2:\ns_endpgm")
    kernel_desc(a, "k2_kernel", 512, accum=256)

HEAD = open('recurrent_scan__memory_aug_recurrent_mem_tr__swiglu_ffn__prompt.s.ref').read().split("; Override launch")[0]
if __name__ == "__main__":
    a = Asm()
    a(HEAD.rstrip())
    a(f"; @launch kernel=k1_kernel grid=({k1.K1_GRID},1,1) block=(256,1,1) lds={k1.K1_LDS}")
    a(f"; @launch kernel=k2_kernel grid=(256,1,1) block=(256,1,1) lds={K2_LDS}")
    a(f"; @launch kernel=k3_kernel grid=(256,1,1) block=(256,1,1) lds={k3.K3_LDS}")
    a('.amdgcn_target "amdgcn-amd-amdhsa--gfx950"\n.text')
    for x in sys.argv:
        if '=' in x: rec2.OPT[x.split('=')[0]] = int(x.split('=')[1])
    k1.gen_k1(a)
    gen_k2(a, 'slow' in sys.argv, 'norec' in sys.argv)
    k3.gen_k3(a)
    open(sys.argv[1], "w").write(a.text())
```

```python
class Asm:
    def __init__(self):
        self.L = []
        self.n = 0
    def __call__(self, s=""):
        for line in s.split("\n"):
            self.L.append(line)
    def lab(self, p="L"):
        self.n += 1
        return f"{p}_{self.n}"
    def text(self):
        return "\n".join(self.L) + "\n"

HDR = """; Kernarg: 14 ptrs
"""
def kernel_begin(a, name):
    a(f".globl {name}\n.p2align 8\n.type {name},@function\n{name}:")
def kernel_desc(a, name, vgpr, sgpr=102, accum=None, idy=False):
    if accum is None: accum = min(256, (vgpr + 3)//4*4)
    a(f""".section .rodata,"a"
.p2align 6
.amdhsa_kernel {name}
  .amdhsa_next_free_vgpr {vgpr}
  .amdhsa_next_free_sgpr {sgpr}
  .amdhsa_accum_offset {accum}
  .amdhsa_group_segment_fixed_size 0
  .amdhsa_kernarg_size 112
  .amdhsa_user_sgpr_count 2
  .amdhsa_user_sgpr_kernarg_segment_ptr 1
  .amdhsa_system_sgpr_workgroup_id_x 1
  .amdhsa_float_denorm_mode_32 3
.end_amdhsa_kernel
.text""")
def srd(a, d, base, nbytes):
    a(f"s_mov_b32 s{d}, s{base}\ns_and_b32 s{d+1}, s{base+1}, 0xffff\ns_mov_b32 s{d+2}, {nbytes}\ns_mov_b32 s{d+3}, 0x00020000")

TRACE = False
TR = 0x5000000
def trace(a, soff_expr, sA=96, slot=0):
    if not TRACE: return
    a(f"""s_memrealtime s[{sA}:{sA+1}]
{soff_expr}
s_add_u32 s{sA+2}, s{sA+2}, {TR + slot}
s_waitcnt lgkmcnt(0)
v_mov_b32 v254, s{sA}
v_mov_b32 v255, 0
buffer_store_dword v254, v255, s[8:11], s{sA+2} offen""")
```

```python
from asmlib import *
from layout import *
WS = "s[8:11]"
OOB = 0x40000000
def vr(b, n): return f"v[{b}:{b+n-1}]"
def ar(b, n): return f"a[{b}:{b+n-1}]"
sW, sBUD, sID, sTT, sH, sSEG, sSRC, sM0, sT0, sT1, sT2, sXF, sLOOP = 17, 19, 20, 21, 22, 23, 24, 25, 26, 27, 28, 29, 30
SRDG, SRDU, SRDD, SRDW = 40, 44, 48, 52
vLane, vL16, vSrc0, vSrc1, vRd, vT, vZ = 1, 2, 3, 4, 5, 24, 25
WF, XF = 64, 128
LA = 8
NEGL2E = 0xBFB8AA3B

def bulk_setup(a):
    a(f"""v_lshrrev_b32 v1, 6, v0
s_nop 0
v_readfirstlane_b32 s{sW}, v1
v_and_b32 v{vLane}, 63, v0
v_lshlrev_b32 v{vL16}, 4, v{vLane}
v_mov_b32 v{vZ}, 0
s_mov_b32 s{sBUD}, 0x400000
s_load_dwordx4 s[56:59], s[0:1], 64
s_load_dwordx2 s[60:61], s[0:1], 80
s_load_dwordx2 s[72:73], s[0:1], 0
s_load_dwordx2 s[74:75], s[0:1], 88
s_waitcnt lgkmcnt(0)""")
    srd(a, 64, 72, 2048*896); srd(a, 68, 74, 2048*896)
    srd(a, SRDG, 56, 448*3584); srd(a, SRDU, 58, 448*3584); srd(a, SRDD, 60, 1792*896)

def addr_can(a, RS, swap):
    a(f"""v_bfe_u32 v26, v{vLane}, 4, 1
s_mov_b32 s{sT0}, {RS}
v_mul_lo_u32 v26, v26, s{sT0}
v_lshrrev_b32 v27, 5, v{vLane}
v_lshl_add_u32 v26, v27, 8, v26
v_and_b32 v27, 15, v{vLane}""")
    if swap:
        a(f"""v_and_b32 v28, 9, v27
v_bfe_u32 v29, v27, 1, 1
v_lshl_add_u32 v28, v29, 2, v28
v_bfe_u32 v29, v27, 2, 1
v_lshl_add_u32 v27, v29, 1, v28""")
    a(f"v_lshl_add_u32 v{vSrc0}, v27, 4, v26")
    for b in range(4): a(f"v_add_u32 v{vRd+b}, {b*28672}, v{vL16}")
    a(f"s_mul_i32 s{sM0}, s{sW}, 7168")

def addr_tr(a, rowstride):
    a(f"""v_lshrrev_b32 v26, 5, v{vLane}
v_bfe_u32 v27, v{vLane}, 2, 3
v_xor_b32 v27, v27, v26
v_and_b32 v28, 3, v{vLane}
v_mul_u32_u24 v29, {rowstride}, v26
v_lshl_add_u32 v29, v28, 4, v29
v_mov_b32 v30, {OOB}
v_lshl_add_u32 v{vSrc0}, v27, 6, v29
v_cmp_gt_u32 vcc, 7, v27
v_xor_b32 v27, 2, v27
v_lshl_add_u32 v{vSrc1}, v27, 6, v29
v_cndmask_b32 v{vSrc0}, v30, v{vSrc0}, vcc
v_cmp_gt_u32 vcc, 7, v27
s_nop 1
v_cndmask_b32 v{vSrc1}, v30, v{vSrc1}, vcc
v_bfe_u32 v26, v{vLane}, 2, 2
v_lshrrev_b32 v27, 5, v{vLane}
v_lshl_add_u32 v27, v27, 3, v26
v_lshlrev_b32 v27, 9, v27
v_bfe_u32 v28, v{vLane}, 4, 1
v_lshl_add_u32 v27, v28, 5, v27
v_and_b32 v28, 1, v{vLane}
v_lshl_add_u32 v27, v28, 4, v27
v_bfe_u32 v28, v{vLane}, 1, 1
v_lshl_add_u32 v27, v28, 3, v27""")
    for t in range(7):
        a(f"v_xor_b32 v28, {t}, v26\nv_lshl_add_u32 v{vRd+t}, v28, 6, v27\nv_add_u32 v{vRd+7+t}, 0x10000, v{vRd+t}")
    a(f"s_lshl_b32 s{sM0}, s{sW}, 13")

def engine(a, kind):
    tr = kind in ("F1", "F2")
    NT = 7 if kind == "F2" else 14
    KS = 4 if kind == "F2" else 2
    ND = 8 if tr else 7
    BUF = 32768 if tr else 28672
    RS = {"V": 16*TILE_B, "S": TILE_B}.get(kind)
    rowstride = {"F1": 3584, "F2": 896}.get(kind)
    sadv = {"V": 1024, "S": 1024, "F1": 32*3584, "F2": 64*896}[kind]
    srdw = WS if not tr else f"s[{SRDW}:{SRDW+3}]"
    NST = 14 if kind != "F2" else 4
    XR = 28 if kind != "F2" else 16
    def dma(stage):
        out = []
        for i in range(ND):
            off = i*2*rowstride if tr else i*2*RS
            src = (vSrc1 if (tr and (i & 1)) else vSrc0)
            out.append(f"s_add_u32 m0, s{sM0}, {(stage % 4)*BUF + i*1024}\ns_add_u32 s{sT0}, s{sSRC}, {off}")
            out.append(f"buffer_load_dwordx4 v{src}, {srdw}, s{sT0} offen {'' if tr else 'sc1 '}lds")
        out.append(f"s_add_u32 s{sSRC}, s{sSRC}, {sadv}")
        return out
    def xld(kk):
        return f"buffer_load_dwordx4 {vr(XF+4*(kk % XR),4)}, v{vL16}, {WS}, s{sXF} offen offset:{(kk & 3)*1024} sc1"
    def rd(n):
        st_, rem = divmod(n, 28); k2, p = divmod(rem, NT)
        b = WF + 4*(n % 16)
        if not tr:
            return [f"ds_read_b128 {vr(b,4)}, v{vRd + st_ % 4} offset:{rem*1024}"]
        bb = st_ % 4
        if kind == "F1": unit, off = p % 7, k2*16384 + (p // 7)*8192
        else: unit, off = p, k2*8192
        va = vRd + unit + (7 if bb >= 2 else 0); off += (bb & 1)*32768
        return [f"ds_read_b64_tr_b16 {vr(b,2)}, v{va} offset:{off}", f"ds_read_b64_tr_b16 {vr(b+2,2)}, v{va} offset:{off+2048}"]
    per = ND + (4 if kind == "F2" else 0)
    for x in dma(0): a(x)
    if kind != "F2":
        for kk in range(28):
            if kk and kk % 4 == 0: a(f"s_add_u32 s{sXF}, s{sXF}, 4096")
            a(f"buffer_load_dwordx4 {vr(XF+4*kk,4)}, v{vL16}, {WS}, s{sXF} offen offset:{(kk & 3)*1024} sc1")
        for s_ in (1, 2):
            for x in dma(s_): a(x)
    else:
        for kk in range(4): a(xld(kk))
        a(f"s_add_u32 s{sXF}, s{sXF}, 4096")
        for s_ in (1, 2):
            for x in dma(s_): a(x)
            for kk in range(4): a(xld(4*s_ + kk))
            a(f"s_add_u32 s{sXF}, s{sXF}, 4096")
        for r in range(112): a(f"v_accvgpr_write_b32 a{r}, 0")
    a(f"s_waitcnt vmcnt({2*per})\ns_barrier")
    trace(a, f"s_lshl_b32 s98, s{sID}, 4", slot=0x400C)
    for n in range(LA):
        for x in rd(n): a(x)
    Lloop = a.lab("Lf2")
    if kind == "F2": a(f"s_mov_b32 s{sLOOP}, 7\n{Lloop}:")
    N = NST*28
    fill = []
    for n in range(N):
        st_, rem = divmod(n, 28); k2, p = divmod(rem, NT)
        kk = st_*KS + k2
        last = kind != "F2" and n + LA >= N
        cnt = min(LA - 1, N - 1 - n) if kind != "F2" else LA - 1
        a(f"s_waitcnt lgkmcnt({cnt*(2 if tr else 1)})")
        w_, x_ = vr(WF + 4*(n % 16), 4), vr(XF + 4*(kk % XR), 4)
        A_, B_ = (x_, w_) if kind == "V" else (w_, x_)
        C_ = "0" if (kk == 0 and kind != "F2") else ar(16*p, 16)
        a(f"v_mfma_f32_32x32x16_bf16 {ar(16*p,16)}, {A_}, {B_}, {C_}")
        if rem == 28 - LA - 1 and (kind == "F2" or st_ + 1 < NST):
            more = kind == "F2" or st_ + 2 < NST
            a(f"s_waitcnt vmcnt({per if more else 0})\ns_barrier")
            if kind == "F2" or st_ + 3 < NST:
                fill = dma(st_ + 3)
                if kind == "F2": pend_x = [xld(4*(st_+3) + j) for j in range(4)] + [f"s_add_u32 s{sXF}, s{sXF}, 4096"]
        if not last:
            for x in rd((n + LA) % (N if kind == "F2" else 10**9)): a(x)
        if kind == "F2" and rem == 27:
            fill = fill + pend_x
        gap = 2 if kind == "F2" else 3
        if fill and (n % gap == 0 or kind != "F2" and False):
            x = fill.pop(0); a(x)
            if x.startswith("s_add_u32 m0"): a(fill.pop(0))
            while fill and fill[0].startswith("s_add_u32 s") : a(fill.pop(0))
    if kind == "F2":
        for x in fill: a(x)
        a(f"s_sub_u32 s{sLOOP}, s{sLOOP}, 1\ns_cmp_lg_u32 s{sLOOP}, 0\ns_cbranch_scc1 {Lloop}\ns_waitcnt vmcnt(0) lgkmcnt(0)")
    assert kind == "F2" or not fill
    trace(a, f"s_lshl_b32 s98, s{sID}, 4", slot=0x4004)
    a("s_nop 15")

def signal(a, cntbase):
    L = a.lab("Lsig")
    a(f"""s_waitcnt vmcnt(0)
s_barrier
s_cmp_lg_u32 s{sW}, 0
s_cbranch_scc1 {L}
s_lshl_b32 s{sT0}, s{sTT}, 7
s_add_u32 s{sT0}, s{sT0}, {cntbase}
v_mov_b32 v26, 1
v_mov_b32 v27, {OOB}
v_cmp_eq_u32 vcc, 0, v{vLane}
s_nop 1
v_cndmask_b32 v27, v27, v{vZ}, vcc
buffer_atomic_add v26, v27, {WS}, s{sT0} offen
{L}:""")

def rd_acc(a, dst, src, n):
    for i in range(n): a(f"v_accvgpr_read_b32 v{dst+i}, a{src+i}")

def item_V(a):
    addr_can(a, 16*TILE_B, False)
    a(f"""s_and_b32 s{sT0}, s{sW}, 1
s_mul_i32 s{sSRC}, s{sT0}, {7*32*TILE_B}
s_lshr_b32 s{sT0}, s{sW}, 1
s_lshl_b32 s{sT0}, s{sT0}, 9
s_add_u32 s{sSRC}, s{sSRC}, s{sT0}
s_mul_i32 s{sT0}, s{sH}, {TILE_B}
s_add_u32 s{sSRC}, s{sSRC}, s{sT0}
s_add_u32 s{sSRC}, s{sSRC}, {BCAN}
s_mul_i32 s{sXF}, s{sSEG}, 28672
s_add_u32 s{sXF}, s{sXF}, {XNAT}""")
    p0_wait(a, 1)
    engine(a, "V")
    a(f"""v_bfe_u32 v26, v{vLane}, 4, 1
v_lshlrev_b32 v26, 14, v26
v_lshrrev_b32 v27, 5, v{vLane}
v_lshl_add_u32 v26, v27, 8, v26
v_and_b32 v27, 15, v{vLane}
v_lshl_add_u32 v26, v27, 4, v26
s_mul_i32 s{sT0}, s{sSEG}, {28*16384}
s_lshl_b32 s{sT1}, s{sH}, 10
s_add_u32 s{sT0}, s{sT0}, s{sT1}
s_add_u32 s{sT0}, s{sT0}, {VOOP}""")
    for p in range(14):
        b = 32 + 16*(p & 1)
        rd_acc(a, b, 16*p, 16)
        for r in range(8): a(f"v_cvt_pk_bf16_f32 v{b+r}, v{b+2*r}, v{b+2*r+1}")
        a(f"buffer_store_dwordx4 {vr(b,4)}, v26, {WS}, s{sT0} offen sc1")
        a(f"buffer_store_dwordx4 {vr(b+4,4)}, v26, {WS}, s{sT0} offen offset:512 sc1")
        a(f"s_add_u32 s{sT0}, s{sT0}, 32768")
    signal(a, VCNT)

def silu_inplace(a, b, n, tmp):
    for i in range(n): a(f"v_mul_f32 v{tmp+i}, s{sT2}, v{b+i}")
    for i in range(n): a(f"v_exp_f32 v{tmp+i}, v{tmp+i}")
    for i in range(n): a(f"v_add_f32 v{tmp+i}, 1.0, v{tmp+i}")
    for i in range(n): a(f"v_rcp_f32 v{tmp+i}, v{tmp+i}")
    for i in range(n): a(f"v_mul_f32 v{b+i}, v{b+i}, v{tmp+i}")

def item_F1(a):
    addr_tr(a, 3584)
    a(f"""s_and_b32 s{sT0}, s{sW}, 1
s_cmp_eq_u32 s{sT0}, 0
s_cselect_b32 s{SRDW}, s{SRDG}, s{SRDU}
s_cselect_b32 s{SRDW+1}, s{SRDG+1}, s{SRDU+1}
s_mov_b32 s{SRDW+2}, {448*3584}
s_mov_b32 s{SRDW+3}, 0x00020000
s_lshr_b32 s{sT0}, s{sW}, 1
s_mul_i32 s{sSRC}, s{sT0}, {16*3584}
s_mul_i32 s{sT0}, s{sH}, 448
s_add_u32 s{sSRC}, s{sSRC}, s{sT0}
s_mul_i32 s{sXF}, s{sSEG}, 28672
s_add_u32 s{sXF}, s{sXF}, {XNAT}""")
    p0_wait(a, None)
    engine(a, "F1")
    a(f"""s_mul_i32 s{sT0}, s{sSEG}, {112*1024}
s_mul_i32 s{sT1}, s{sH}, 14336
s_add_u32 s{sT0}, s{sT0}, s{sT1}
s_add_u32 s{sT0}, s{sT0}, {HF}
s_mov_b32 s{sT2}, {NEGL2E}""")
    for t in range(7):
        b = 64 + 32*(t & 1)
        rd_acc(a, b, 16*t, 16); rd_acc(a, b+16, 16*(7+t), 16)
        silu_inplace(a, b, 16, 32)
        for i in range(16): a(f"v_mul_f32 v{b+i}, v{b+i}, v{b+16+i}")
        for r in range(8): a(f"v_cvt_pk_bf16_f32 v{b+r}, v{b+2*r}, v{b+2*r+1}")
        a(f"buffer_store_dwordx4 {vr(b,4)}, v{vL16}, {WS}, s{sT0} offen sc1")
        a(f"buffer_store_dwordx4 {vr(b+4,4)}, v{vL16}, {WS}, s{sT0} offen offset:1024 sc1")
        a(f"s_add_u32 s{sT0}, s{sT0}, 2048")
    signal(a, HCNT)

def wait_cnt(a, soff, target, sleep):
    L, Lo = a.lab("Lwc"), a.lab("Lwo")
    a(f"""{L}:
buffer_load_dword v26, v{vZ}, {WS}, s{soff} offen sc1
s_waitcnt vmcnt(0)
v_cmp_gt_u32 vcc, {target}, v26
s_cbranch_vccz {Lo}
s_sleep {sleep}
s_sub_u32 s{sBUD}, s{sBUD}, 1
s_cbranch_scc0 {L}
s_mov_b32 s{sBUD}, 0
{Lo}:""")

def wait_multi(a, specs, sleep, far=None):
    L, Lo = a.lab("Lwm"), a.lab("Lwo")
    a(f"s_cmp_lg_u32 s{sW}, 0\ns_cbranch_scc1 {Lo}")
    if far is not None:
        Lf, Lg = a.lab("Lwf"), a.lab("Lwg")
        a(f"""s_mov_b32 s39, {PROG}
{Lf}:
buffer_load_dword v26, v{vZ}, {WS}, s39 offen sc1
s_waitcnt vmcnt(0)
v_readfirstlane_b32 s33, v26
s_cmp_gt_u32 s33, s{far}
s_cbranch_scc1 {Lg}
s_sub_u32 s{sBUD}, s{sBUD}, 1
s_cbranch_scc1 {Lg}
s_sleep 16
s_add_u32 s33, s33, 2
s_cmp_gt_u32 s33, s{far}
s_cbranch_scc1 {Lf}
s_sleep 127
s_branch {Lf}
{Lg}:
s_max_i32 s{sBUD}, s{sBUD}, 0""")
    a(f"{L}:")
    for i, (so, tg) in enumerate(specs):
        a(f"buffer_load_dword v{26+i}, v{vZ}, {WS}, s{so} offen sc1")
    a("s_waitcnt vmcnt(0)")
    for i, (so, tg) in enumerate(specs):
        if i == 0: a(f"v_cmp_gt_u32 vcc, {tg}, v26")
        else: a(f"v_cmp_gt_u32 s[62:63], {tg}, v{26+i}\ns_nop 3\ns_or_b64 vcc, vcc, s[62:63]")
    a(f"""{'s_cbranch_vccz' if len(specs) == 1 else 's_cbranch_scc0'} {Lo}
s_sleep {sleep}
s_sub_u32 s{sBUD}, s{sBUD}, 1
s_cbranch_scc0 {L}
s_mov_b32 s{sBUD}, 0
{Lo}:
s_barrier""")

def p0_wait(a, isB):
    a(f"s_lshl_b32 s{sT1}, s{sTT}, 7\ns_add_u32 s{sT1}, s{sT1}, {LCNT}")
    sp = [(sT1, 16)]
    if isB is not None:
        a(f"s_lshl_b32 s{sT2}, s{sH}, 8\ns_add_u32 s{sT2}, s{sT2}, {ABCNT + 128*isB}")
        sp.append((sT2, 8))
    wait_multi(a, sp, 2)

def item_F2(a):
    addr_tr(a, 896)
    a(f"""s_mov_b32 s{SRDW}, s{SRDD}
s_mov_b32 s{SRDW+1}, s{SRDD+1}
s_mov_b32 s{SRDW+2}, {1792*896}
s_mov_b32 s{SRDW+3}, 0x00020000
s_mul_i32 s{sSRC}, s{sW}, {16*896}
s_mul_i32 s{sT0}, s{sH}, 448
s_add_u32 s{sSRC}, s{sSRC}, s{sT0}
s_mul_i32 s{sXF}, s{sSEG}, {112*1024}
s_add_u32 s{sXF}, s{sXF}, {HF}
s_lshl_b32 s{sT1}, s{sTT}, 7
s_add_u32 s{sT1}, s{sT1}, {HCNT}""")
    wait_multi(a, [(sT1, 8)], 8)
    engine(a, "F2")
    a(f"""v_and_b32 v26, 31, v{vLane}
v_mul_u32_u24 v26, 896, v26
v_lshrrev_b32 v27, 5, v{vLane}
v_lshl_add_u32 v26, v27, 4, v26
s_mul_i32 s{sT0}, s{sSEG}, 28672
s_mul_i32 s{sT1}, s{sH}, 448
s_add_u32 s{sT0}, s{sT0}, s{sT1}
s_add_u32 s{sT0}, s{sT0}, {GB}
s_mov_b32 s{sT2}, {NEGL2E}""")
    for t in range(7):
        b = 64 + 16*(t & 1)
        rd_acc(a, b, 16*t, 16)
        silu_inplace(a, b, 16, 32)
        for r in range(8): a(f"v_cvt_pk_bf16_f32 v{b+r}, v{b+2*r}, v{b+2*r+1}")
        a(f"buffer_store_dwordx4 {vr(b,4)}, v26, {WS}, s{sT0} offen offset:{64*t} sc1")
        a(f"buffer_store_dwordx4 {vr(b+4,4)}, v26, {WS}, s{sT0} offen offset:{64*t+32} sc1")
    signal(a, GCNT)

def item_S(a):
    addr_can(a, TILE_B, True)
    a(f"""s_and_b32 s{sT0}, s{sW}, 1
s_mul_i32 s{sSRC}, s{sT0}, {14*TILE_B}
s_lshr_b32 s{sT0}, s{sW}, 1
s_lshl_b32 s{sT0}, s{sT0}, 9
s_add_u32 s{sSRC}, s{sSRC}, s{sT0}
s_mul_i32 s{sT0}, s{sH}, {28*TILE_B}
s_add_u32 s{sSRC}, s{sSRC}, s{sT0}
s_add_u32 s{sSRC}, s{sSRC}, {ACAN}
s_mul_i32 s{sXF}, s{sSEG}, 28672
s_add_u32 s{sXF}, s{sXF}, {XNAT}""")
    p0_wait(a, 0)
    engine(a, "S")
    for p in range(14):
        rd_acc(a, 32, 16*p, 16)
        for r in range(8): a(f"v_cvt_pk_bf16_f32 v{XF+8*p+r}, v{32+2*r}, v{33+2*r}")
    a(f"""v_bfe_u32 v26, v{vLane}, 4, 1
v_mul_u32_u24 v26, 14336, v26
v_lshrrev_b32 v27, 5, v{vLane}
v_lshl_add_u32 v26, v27, 8, v26
v_and_b32 v28, 15, v{vLane}
v_lshl_add_u32 v26, v28, 4, v26
s_mul_i32 s{sT0}, s{sSEG}, 28672
s_add_u32 s{sT0}, s{sT0}, {XREC}
v_bfe_u32 v28, v{vLane}, 1, 2
v_lshlrev_b32 v28, 6, v28
v_lshl_add_u32 v28, v27, 5, v28
v_and_b32 v29, 1, v{vLane}
v_lshl_add_u32 v28, v29, 4, v28
v_and_b32 v29, 31, v{vLane}
v_lshlrev_b32 v27, 2, v27
v_sub_u32 v29, v29, v27""")
    for kk in range(28):
        if kk and kk % 8 == 0: a(f"s_add_u32 s{sT0}, s{sT0}, 4096")
        a(f"buffer_load_dwordx4 {ar(4*kk,4)}, v26, {WS}, s{sT0} offen offset:{(kk & 7)*512} sc1")
    for kk in range(28):
        a(f"s_waitcnt vmcnt({27-kk})")
        a(f"v_mfma_f32_32x32x16_bf16 v[64:79], {ar(4*kk,4)}, {vr(XF+4*kk,4)}, {'0' if kk == 0 else 'v[64:79]'}")
    Lp, Lgo, Lm, Lok, Lnear = (a.lab(x) for x in ("Lsp", "Lsg", "Lsm", "Lso", "Lsn"))
    a(f"""s_mov_b32 s{sT1}, {PROG}
{Lp}:
buffer_load_dword v30, v{vZ}, {WS}, s{sT1} offen sc1
s_waitcnt vmcnt(0)
v_readfirstlane_b32 s{sT2}, v30
s_cmp_gt_u32 s{sT2}, s{sSEG}
s_cbranch_scc1 {Lgo}
s_sub_u32 s{sBUD}, s{sBUD}, 1
s_cbranch_scc1 {Lnear}
s_sleep 4
s_add_u32 s{sT2}, s{sT2}, 1
s_cmp_gt_u32 s{sT2}, s{sSEG}
s_cbranch_scc1 {Lp}
s_sleep 32
s_add_u32 s{sT2}, s{sT2}, 3
s_cmp_gt_u32 s{sT2}, s{sSEG}
s_cbranch_scc1 {Lp}
s_sleep 96
s_branch {Lp}
{Lnear}:
s_mov_b32 s{sBUD}, 0
{Lgo}:
s_lshl_b32 s{sT0}, s{sSEG}, 13
s_add_u32 s{sT0}, s{sT0}, {MEMALL}
s_add_u32 s{sT1}, s{sT0}, 4096
{Lm}:""")
    for kk in range(28):
        so = sT0 if kk < 16 else sT1
        a(f"buffer_load_dwordx4 {ar(112+4*kk,4)}, v28, {WS}, s{so} offen offset:{(kk & 15)*256} sc1")
    for kk in range(28):
        a(f"s_waitcnt vmcnt({27-kk})")
        a(f"v_mfma_f32_32x32x16_bf16 v[80:95], {ar(112+4*kk,4)}, {vr(XF+4*kk,4)}, {'0' if kk == 0 else 'v[80:95]'}")
    a(f"""s_nop 15
v_cmp_u_f32 vcc, v80, v81
v_cmp_u_f32 s[62:63], v82, v83
s_nop 3
s_or_b64 vcc, vcc, s[62:63]
s_cbranch_scc0 {Lok}
s_sleep 2
s_sub_u32 s{sBUD}, s{sBUD}, 1
s_cbranch_scc0 {Lm}
s_mov_b32 s{sBUD}, 0
{Lok}:
v_mov_b32 v31, 0xff800000""")
    for r in range(16):
        key = 8*(r >> 2) + (r & 3)
        a(f"v_cmp_le_i32 vcc, {key}, v29\ns_nop 1\nv_cndmask_b32 v{64+r}, v31, v{64+r}, vcc")
    a("v_max3_f32 v32, v64, v65, v66")
    for r in range(67, 83, 2): a(f"v_max3_f32 v32, v32, v{r}, v{r+1}")
    a("""v_max_f32 v32, v32, v83
v_mov_b32 v33, v32
s_nop 1
v_permlane32_swap_b32 v33, v32
v_max_f32 v32, v32, v33""")
    for r in range(20): a(f"v_sub_f32 v{64+r}, v{64+r}, v32")
    for r in range(20): a(f"v_exp_f32 v{64+r}, v{64+r}")
    a("v_add_f32 v32, v64, v65")
    for r in range(2, 20): a(f"v_add_f32 v32, v32, v{64+r}")
    a("""v_mov_b32 v33, v32
s_nop 1
v_permlane32_swap_b32 v33, v32
v_add_f32 v32, v32, v33
v_rcp_f32 v32, v32
s_nop 0""")
    for r in range(20): a(f"v_mul_f32 v{64+r}, v{64+r}, v32")
    for r in range(10): a(f"v_cvt_pk_bf16_f32 v{64+r}, v{64+2*r}, v{65+2*r}")
    a(f"""v_bfe_u32 v26, v{vLane}, 4, 1
v_lshrrev_b32 v27, 5, v{vLane}
v_and_b32 v28, 15, v{vLane}
v_lshlrev_b32 v30, 14, v26
v_lshl_add_u32 v30, v27, 8, v30
v_lshl_add_u32 v30, v28, 4, v30
s_lshl_b32 s{sT0}, s{sSEG}, 15
s_lshl_b32 s{sT1}, s{sH}, 10
s_add_u32 s{sT0}, s{sT0}, s{sT1}
s_add_u32 s{sT0}, s{sT0}, {PX}
buffer_store_dwordx4 v[64:67], v30, {WS}, s{sT0} offen sc1
buffer_store_dwordx4 v[68:71], v30, {WS}, s{sT0} offen offset:512 sc1
v_and_b32 v30, 31, v{vLane}
v_lshlrev_b32 v30, 4, v30
v_lshl_add_u32 v30, v27, 3, v30
s_lshl_b32 s{sT0}, s{sSEG}, 13
s_lshl_b32 s{sT1}, s{sH}, 9
s_add_u32 s{sT0}, s{sT0}, s{sT1}
s_add_u32 s{sT0}, s{sT0}, {PM}
buffer_store_dwordx2 v[72:73], v30, {WS}, s{sT0} offen sc1
s_lshl_b32 s{sT0}, s{sSEG}, 7
s_add_u32 s{sT0}, s{sT0}, {PCNT}
v_mov_b32 v26, 1
v_mov_b32 v27, {OOB}
v_cmp_eq_u32 vcc, 0, v{vLane}
s_waitcnt vmcnt(0)
s_nop 0
v_cndmask_b32 v27, v27, v{vZ}, vcc
buffer_atomic_add v26, v27, {WS}, s{sT0} offen
s_barrier""")

SRDX, SRDO = 64, 68
def item_O(a):
    PF, VF, AC = 8+24, 72, 212
    sg, rq = sTT, sH
    a(f"""s_lshr_b32 s{sT0}, s{sg}, 2
s_lshl_b32 s{sT0}, s{sT0}, 7
s_add_u32 s{sT1}, s{sT0}, {GCNT}
s_add_u32 s{sT0}, s{sT0}, {VCNT}""")
    wait_multi(a, [(sT0, 16), (sT1, 2)], 32)
    a(f"""s_mul_i32 s33, s{sg}, 28
s_mul_i32 s34, s{rq}, 7
s_add_u32 s33, s33, s34
s_lshl_b32 s34, s33, 14
s_lshl_b32 s35, s{sW}, 12
s_add_u32 s34, s34, s35
s_add_u32 s34, s34, {VOOP}
s_lshl_b32 s35, s33, 12
s_lshl_b32 s36, s{sW}, 10
s_add_u32 s35, s35, s36
s_add_u32 s35, s35, {VOMEM}""")
    for r in range(7):
        for hh in range(4):
            a(f"buffer_load_dwordx4 {vr(VF+20*r+4*hh,4)}, v{vL16}, {WS}, s34 offen offset:{hh*1024} sc1")
        a("s_add_u32 s34, s34, 16384")
    a(f"""s_mov_b32 s36, 0x12492493
v_mul_hi_u32 v220, v0, s36
v_mul_u32_u24 v221, 14, v220
v_sub_u32 v221, v0, v221
v_add_u32 v222, 256, v0
v_mul_hi_u32 v223, v222, s36
v_mul_u32_u24 v244, 14, v223
v_sub_u32 v222, v222, v244
v_mul_u32_u24 v244, 896, v220
v_lshl_add_u32 v244, v221, 4, v244
v_mul_u32_u24 v245, 896, v223
v_lshl_add_u32 v245, v222, 4, v245
v_mov_b32 v246, {OOB}
v_cmp_gt_u32 vcc, 192, v0
s_mul_i32 s37, s{sg}, 28672
s_mul_i32 s38, s{rq}, 224
v_cndmask_b32 v245, v246, v245, vcc
s_add_u32 s37, s37, s38
s_add_u32 s38, s37, {GB}
buffer_load_dwordx4 v[224:227], v244, s[{SRDX}:{SRDX+3}], s37 offen
buffer_load_dwordx4 v[228:231], v244, {WS}, s38 offen sc1
buffer_load_dwordx4 v[232:235], v245, s[{SRDX}:{SRDX+3}], s37 offen
buffer_load_dwordx4 v[236:239], v245, {WS}, s38 offen sc1
v_lshrrev_b32 v246, 4, v{vLane}
v_lshlrev_b32 v250, 2, v246
v_mul_u32_u24 v246, 272, v246
v_and_b32 v247, 15, v{vLane}
v_lshl_add_u32 v251, v247, 4, v250
v_lshl_add_u32 v246, v247, 2, v246
s_mul_i32 s39, s{sW}, {14*1088}
v_add_u32 v246, s39, v246""")
    for (tk, ch, dst) in ((220, 221, 247), (223, 222, 248)):
        a(f"""v_lshrrev_b32 v249, 1, v{ch}
v_lshlrev_b32 v249, 1, v249
v_bfe_u32 v250, v{tk}, 4, 1
v_add_u32 v249, v249, v250
v_mul_u32_u24 v249, 1088, v249
v_and_b32 v250, 15, v{tk}
v_mul_u32_u24 v250, 68, v250
v_add_u32 v249, v249, v250
v_and_b32 v250, 1, v{ch}
v_lshl_add_u32 v{dst}, v250, 5, v249""")
    a(f"""s_lshl_b32 s{sT0}, s{sg}, 7
s_add_u32 s{sT1}, s{sT0}, {PCNT}
s_mov_b32 s{sT0}, {VPROG}
s_add_u32 s{sT2}, s{sg}, 1""")
    wait_multi(a, [(sT0, f"s{sT2}"), (sT1, 16)], 4, far=sg)
    a(f"""s_lshl_b32 s33, s{sg}, 15
s_lshl_b32 s34, s{sW}, 12
s_add_u32 s33, s33, s34
s_add_u32 s33, s33, {PX}
s_add_u32 s34, s33, 16384
s_lshl_b32 s36, s{sg}, 13
s_lshl_b32 s39, s{sW}, 11
s_add_u32 s36, s36, s39
s_add_u32 s36, s36, {PM}""")
    for mt in range(2):
        for hh in range(4):
            a(f"buffer_load_dwordx4 {vr(PF+20*mt+4*hh,4)}, v{vL16}, {WS}, s{(33, 34)[mt]} offen offset:{hh*1024} sc1")
    for mt in range(2):
        for hh in range(4):
            a(f"buffer_load_dword v{PF+20*mt+16+hh}, v251, {WS}, s36 offen offset:{hh*512+mt*256} sc1")
    for r in range(7):
        a(f"buffer_load_dwordx4 {vr(VF+20*r+16,4)}, v{vL16}, {WS}, s35 offen sc1\ns_add_u32 s35, s35, 4096")
    a("s_waitcnt vmcnt(15)")
    for r in range(7):
        for k in range(4):
            for mt in range(2):
                d = (2*r + mt)*4
                a(f"v_mfma_f32_16x16x32_bf16 {ar(d,4)}, {vr(PF+20*mt+4*k,4)}, {vr(VF+20*r+4*k,4)}, {'0' if k == 0 else ar(d,4)}")
    for r in range(7):
        a(f"s_waitcnt vmcnt({6-r})")
        for mt in range(2):
            d = (2*r + mt)*4
            a(f"v_mfma_f32_16x16x32_bf16 {ar(d,4)}, {vr(PF+20*mt+16,4)}, {vr(VF+20*r+16,4)}, {ar(d,4)}")
    a("s_nop 7")
    for t in range(14):
        a(f"v_add_u32 v250, {t*1088}, v246")
        a(f"ds_write2_b32 v250, a{4*t}, a{4*t+1} offset0:0 offset1:17")
        a(f"ds_write2_b32 v250, a{4*t+2}, a{4*t+3} offset0:34 offset1:51")
    a("s_waitcnt lgkmcnt(0)\ns_barrier")
    for ci, (adr, xb, oa) in enumerate(((247, 224, 244), (248, 232, 245))):
        for w in range(4):
            a(f"v_add_u32 v250, {w*14*1088}, v{adr}")
            for j in range(4):
                a(f"ds_read2_b32 {vr(48+8*w+2*j,2)}, v250 offset0:{2*j} offset1:{2*j+1}")
        a("s_waitcnt lgkmcnt(0)")
        for j in range(8):
            a(f"v_add_f32 v{48+j}, v{48+j}, v{56+j}\nv_add_f32 v{64+j}, v{64+j}, v{72+j}\nv_add_f32 v{48+j}, v{48+j}, v{64+j}")
        for j in range(4):
            a(f"""v_lshlrev_b32 v80, 16, v{xb+j}
v_and_b32 v81, 0xffff0000, v{xb+j}
v_lshlrev_b32 v82, 16, v{xb+4+j}
v_and_b32 v83, 0xffff0000, v{xb+4+j}
v_fmac_f32 v80, v{48+2*j}, v82
v_fmac_f32 v81, v{49+2*j}, v83
v_cvt_pk_bf16_f32 v{84+4*ci+j}, v80, v81""")
        a(f"buffer_store_dwordx4 {vr(84+4*ci,4)}, v{oa}, s[{SRDO}:{SRDO+3}], s37 offen")
    a("s_barrier")

QL = 56
def vq_table():
    tab = []
    for q in range(7):
        def V(lo, hi):
            l = []
            for tt in range(lo, hi):
                l += [tt*16 + 2*q, tt*16 + 2*q + 1]
                for e in range(2):
                    if (tt*2 + e) % 7 == q: l.append(tt*16 + 14 + e)
            return l
        F = []
        for tt in range(16):
            F.append(256 + tt*8 + q)
            if tt % 7 == q: F.append(256 + tt*8 + 7)
        l = V(0, VFIRST) + F + V(VFIRST, 16)
        assert len(l) <= QL, len(l)
        tab.append(l + [0xFFFF]*(QL - len(l)))
    assert sorted(x for t in tab for x in t if x != 0xFFFF) == list(range(384))
    return tab
VFIRST = 4

LQ = 131072
NITEM = 928
sQ, sVD = 31, 32
def dispatcher(a, Lexit):
    Ln, LV, LF1, LF2, LS, LO, Lsk, Lg, Lvq, Lvn, Lgot = (a.lab(x) for x in ("Lnext", "LiV", "LiF1", "LiF2", "LiS", "LiO", "Lq", "Lglob", "Lvq", "Lvn", "Lgot"))
    tab = vq_table()
    a(f"""s_add_u32 s{sQ}, s3, 6
s_cmp_ge_u32 s{sQ}, 7
s_cselect_b32 s{sT0}, 7, 0
s_sub_u32 s{sQ}, s{sQ}, s{sT0}
s_cmp_ge_u32 s{sQ}, 7
s_cselect_b32 s{sQ}, 0, s{sQ}
s_mov_b32 s{sVD}, 0
{Ln}:
s_cmp_lg_u32 s{sW}, 0
s_cbranch_scc1 {Lsk}
v_mov_b32 v27, {OOB}
v_cmp_eq_u32 vcc, 0, v{vLane}
s_nop 1
v_cndmask_b32 v27, v27, v{vZ}, vcc
s_cmp_lg_u32 s{sVD}, 0
s_cbranch_scc1 {Lg}
{Lvq}:
s_lshl_b32 s{sT0}, s{sQ}, 7
s_add_u32 s{sT0}, s{sT0}, {QV}
v_mov_b32 v26, 1
buffer_atomic_add v26, v27, {WS}, s{sT0} offen sc0
s_getpc_b64 s[34:35]
Lvpc:
s_mul_i32 s{sT1}, s{sQ}, {4*QL}
s_add_u32 s34, s34, Lvtab-Lvpc
s_addc_u32 s35, s35, 0
s_waitcnt vmcnt(0)
v_readfirstlane_b32 s{sID}, v26
s_cmp_ge_u32 s{sID}, {QL}
s_cbranch_scc1 {Lvn}
s_lshl_b32 s{sID}, s{sID}, 2
s_add_u32 s{sT1}, s{sT1}, s{sID}
s_load_dword s{sID}, s[34:35], s{sT1}
s_waitcnt lgkmcnt(0)
s_cmp_eq_u32 s{sID}, 0xffff
s_cbranch_scc0 {Lgot}
{Lvn}:
v_lshlrev_b32 v28, 7, v{vLane}
s_mov_b32 s{sT0}, {QV}
v_min_u32 v28, 768, v28
buffer_load_dword v26, v28, {WS}, s{sT0} offen sc1
s_waitcnt vmcnt(0)
v_cmp_gt_u32 vcc, {QL}, v26
s_nop 3
s_and_b32 s{sT0}, vcc_lo, 0x7f
s_ff1_i32_b32 s{sQ}, s{sT0}
s_cbranch_scc1 {Lvq}
s_mov_b32 s{sVD}, 1
{Lg}:
s_mov_b32 s{sT0}, {QUEUE}
v_mov_b32 v26, 1
buffer_atomic_add v26, v27, {WS}, s{sT0} offen sc0
s_waitcnt vmcnt(0)
v_readfirstlane_b32 s{sID}, v26
s_add_u32 s{sID}, s{sID}, 384
{Lgot}:
v_mov_b32 v28, {LQ}
v_mov_b32 v26, s{sID}
ds_write_b32 v28, v26
s_waitcnt lgkmcnt(0)
{Lsk}:
s_barrier
v_mov_b32 v28, {LQ}
ds_read_b32 v26, v28
s_waitcnt lgkmcnt(0)
v_readfirstlane_b32 s{sID}, v26
s_barrier
s_cmp_ge_u32 s{sID}, {NITEM}
s_cbranch_scc1 {Lexit}""")
    trace(a, f"s_lshl_b32 s98, s{sID}, 4", slot=0x4000)
    def dec(base, sh, extra=0):
        a(f"""s_sub_u32 s{sT0}, s{sID}, {base}
s_lshr_b32 s{sTT}, s{sT0}, {sh}
s_add_u32 s{sTT}, s{sTT}, {extra}
s_and_b32 s{sH}, s{sT0}, {(1 << sh) - 1}
s_lshl_b32 s{sSEG}, s{sTT}, 2
s_add_u32 s{sSEG}, s{sSEG}, s{sW}""")
    for hi, base, sh, ex, L in ((256, 0, 4, 0, LV), (384, 256, 3, 0, LF1), (448, 384, 4, 0, LS), (480, 448, 1, 0, LF2), (672, 480, 4, 4, LS)):
        Lx = a.lab("Ld")
        a(f"s_cmp_lt_u32 s{sID}, {hi}\ns_cbranch_scc0 {Lx}"); dec(base, sh, ex); a(f"s_branch {L}\n{Lx}:")
    dec(672, 2); a(f"s_branch {LO}")
    a("Lvtab:")
    for t in tab: a(".long " + ", ".join(map(str, t)))
    for L, f in ((LO, item_O), (LV, item_V), (LF1, item_F1), (LF2, item_F2), (LS, item_S)):
        a(f".p2align 6\n{L}:"); f(a); trace(a, f"s_lshl_b32 s98, s{sID}, 4", slot=0x4008); a(f"s_branch {Ln}")
```

```python
import numpy as np
from model import *
KB = 1024; MB = 1 << 20
ACAN = 0
BCAN = 0x0700000
XREC = 0x0E00000
VOOP = 0x1000000
VOMEM = 0x2C00000
MEMALL = 0x3300000
MR = 0x3400000
SR = 0x3420000
PR = 0x3440000
CNT = 0x3450000
XNAT = 0x3500000
HF = 0x3700000
GB = 0x3E00000
PX = 0x4000000
PM = 0x4200000
VCNT, HCNT, QUEUE, PROG = CNT, CNT + 0x800, CNT + 0x1000, CNT + 0x1080
QV = CNT + 0x1100
GCNT = CNT + 0x1800
ABCNT = CNT + 0x2000
LCNT = CNT + 0x3000
PCNT = CNT + 0x4000
VPROG = CNT + 0x1480
TILE_B = 14336
def row16(i, hf): return 4*(i >> 1) + 2*hf + (i & 1)

def build_acan(A):
    out = np.zeros((16, 28, 7, 2, 4, 16, 8), np.uint16)
    Ab = f2b(A)
    for h in range(16):
        for r in range(28):
            out[h, r] = Ab[h][:, 16*r:16*r+16].reshape(7, 2, 4, 8, 16).transpose(0, 1, 2, 4, 3)
    return out
def build_bcan(B):
    out = np.zeros((28, 16, 7, 2, 4, 16, 8), np.uint16)
    Bb = f2b(B)
    for r in range(28):
        for h in range(16):
            blk = Bb[h][:, 16*r:16*r+16]
            out[r, h] = blk.reshape(7, 2, 4, 8, 16).transpose(0, 1, 2, 4, 3)
    return out
def build_xrec(xn):
    xb = f2b(xn).reshape(64, 2, 16, 28, 8, 2)
    out = np.zeros((64, 2, 14, 4, 16, 4, 2), np.uint16)
    for idx in range(14):
        for gB in range(4):
            b = 2*idx + (gB >> 1); x = gB & 1
            out[:, :, idx, gB] = xb[:, :, :, b][:, :, :, [x, x+2, x+4, x+6], :]
    return out
def tok_of(gB, e):
    j2, u = gB >> 1, gB & 1
    return 16*j2 + 8*(e >> 2) + 4*u + (e & 3)
def build_voop(VOx):
    vb = f2b(VOx).reshape(64, 32, 4, 4, 28, 16)
    out = np.zeros((64, 28, 4, 4, 4, 16, 8), np.uint16)
    for gB in range(4):
        for e in range(8):
            out[:, :, :, :, gB, :, e] = vb[:, tok_of(gB, e)].transpose(0, 3, 1, 2, 4)
    return out
def build_mring(mem):
    mb = f2b(mem).reshape(8, 28, 8, 2)
    out = np.zeros((28, 16, 4, 2), np.uint16)
    for i in range(8):
        for hf in range(2):
            out[:, row16(i, hf)] = mb[i][:, [hf, hf+2, hf+4, hf+6]]
    return out
def build_memkey(mem):
    mb = f2b(mem).reshape(8, 28, 8, 2)
    out = np.zeros((28, 2, 8, 4, 2), np.uint16)
    for u in range(2):
        out[:, u] = mb[:, :, [2*u, 2*u+1, 4+2*u, 5+2*u]].transpose(1, 0, 2, 3)
    return out
def parse_memkey(raw):
    a = raw.view(np.uint16)[:28*2*8*8].reshape(28, 2, 8, 4, 2)
    m = np.zeros((8, 28, 8, 2), np.uint16)
    for u in range(2):
        m[:, :, [2*u, 2*u+1, 4+2*u, 5+2*u]] = a[:, u].transpose(1, 0, 2, 3)
    return b2f(m.reshape(8, 448))
def parse_vomem(raw):
    a = raw.view(np.uint16).reshape(28, 4, 4, 16, 4, 2)
    return b2f(a.transpose(1, 4, 2, 5, 0, 3).reshape(16, 8, 448).copy())

def build_xnat(xn):
    xb = f2b(xn).reshape(64, 32, 28, 2, 8)
    return np.ascontiguousarray(xb.transpose(0, 2, 3, 1, 4))
```

```python
from asmlib import *
import asmlib
from layout import *
WS = "s[8:11]"
DBG = "s[12:15]"
OOB = 0x40000000
def vr(b, n): return f"v[{b}:{b+n-1}]"
SCALE = 0x3DB8AA3B
LLN = 3*45056
def lane0_atomic(a, srd_, soff, off=0):
    a(f"""v_mov_b32 v4, 1
v_mov_b32 v5, {OOB}
v_cmp_eq_u32 vcc, 0, v2
s_nop 1
v_cndmask_b32 v5, v5, 0, vcc
buffer_atomic_add v4, v5, {srd_}, {soff} offen offset:{off}""")

def gen_p0(a):
    a(f"""s_load_dwordx4 s[40:43], s[0:1], 0
s_load_dwordx8 s[44:51], s[0:1], 16
v_lshrrev_b32 v1, 6, v0
v_and_b32 v2, 63, v0
v_readfirstlane_b32 s17, v1
s_and_b32 s18, s2, 7
s_lshl_b32 s18, s18, 2
s_lshr_b32 s19, s2, 6
s_add_u32 s18, s18, s19         ; g
s_lshr_b32 s20, s18, 1          ; h
s_and_b32 s21, s18, 1           ; isB
s_bfe_u32 s22, s2, 0x10005      ; kh
s_bfe_u32 s23, s2, 0x20003      ; nq
s_waitcnt lgkmcnt(0)
s_cmp_eq_u32 s21, 0
s_cselect_b32 s24, s44, s48
s_cselect_b32 s25, s45, s49
s_cselect_b32 s26, s46, s50
s_cselect_b32 s27, s47, s51""")
    RO, CO, XS, M0S = 56, 28, 60, 64
    srd(a, RO, 24, 448*8192); srd(a, CO, 26, 448*8192); srd(a, XS, 40, 2048*896); srd(a, M0S, 42, 8*896)
    ro, co = f"s[{RO}:{RO+3}]", f"s[{CO}:{CO+3}]"
    trace(a, "s_lshl_b32 s98, s2, 3")
    a(f"""v_lshlrev_b32 v3, 4, v2
v_mov_b32 v9, {OOB}
v_cmp_gt_u32 vcc, 56, v2
s_lshl_b32 s37, s2, 3
s_lshl_b32 s38, s17, 1
v_cndmask_b32 v4, v9, v3, vcc
v_cndmask_b32 v212, 0, 1.0, vcc
s_add_u32 s37, s37, s38
s_mul_i32 s37, s37, 896
buffer_load_dwordx4 v[204:207], v4, s[{XS}:{XS+3}], s37 offen
buffer_load_dwordx4 v[208:211], v4, s[{XS}:{XS+3}], s37 offen offset:896""")
    a(f"""s_cmp_ge_u32 s2, 16
s_cbranch_scc1 P0noinit
v_lshlrev_b32 v216, 4, v0
v_mov_b32 v220, -1
v_mov_b32 v221, -1
v_mov_b32 v222, -1
v_mov_b32 v223, -1
s_lshl_b32 s37, s2, 15
s_add_u32 s37, s37, {MEMALL}""")
    for i in range(8):
        a(f"buffer_store_dwordx4 v[220:223], v216, {WS}, s37 offen sc1\ns_add_u32 s37, s37, 4096")
    a(f"""s_cmp_eq_u32 s2, 1
s_cbranch_scc0 P0i2
s_mov_b32 s37, {MR+8192}
buffer_store_dwordx4 v[220:223], v216, {WS}, s37 offen sc1
s_mov_b32 s37, {MR+8192+4096}
buffer_store_dwordx4 v[220:223], v216, {WS}, s37 offen sc1
s_mov_b32 s37, {PR}""")
    for i in range(8):
        a(f"buffer_store_dwordx4 v[220:223], v216, {WS}, s37 offen sc1\ns_add_u32 s37, s37, 4096")
    a(f"""P0i2:
s_cmp_eq_u32 s2, 2
s_cbranch_scc0 P0i3
v_mov_b32 v224, 0
v_mov_b32 v225, 0
v_mov_b32 v226, 0
v_mov_b32 v227, 0
s_mov_b32 s37, {CNT}""")
    for i in range(13):
        a(f"buffer_store_dwordx4 v[224:227], v216, {WS}, s37 offen sc1\ns_add_u32 s37, s37, 4096")
    a(f"""P0i3:
s_cmp_eq_u32 s2, 0
s_cbranch_scc0 P0noinit""")
    for it in range(7):
        a(f"""v_add_u32 v8, {it*256}, v0
v_lshrrev_b32 v9, 6, v8
v_lshlrev_b32 v9, 5, v9
v_bfe_u32 v10, v8, 4, 2
v_lshlrev_b32 v10, 1, v10
v_bfe_u32 v11, v8, 2, 1
v_add_u32 v10, v10, v11
v_mul_u32_u24 v10, 896, v10
v_add_u32 v9, v9, v10
v_bfe_u32 v10, v8, 3, 1
v_lshl_add_u32 v9, v10, 2, v9
v_and_b32 v10, 3, v8
v_lshl_add_u32 v9, v10, 3, v9
buffer_load_dword v{224+it}, v9, s[{M0S}:{M0S+3}], 0 offen""")
    a(f"s_mov_b32 s37, {MR}\nv_lshlrev_b32 v8, 2, v0\ns_waitcnt vmcnt(0)")
    for it in range(7):
        a(f"buffer_store_dword v{224+it}, v8, {WS}, s37 offen sc1\ns_add_u32 s37, s37, 1024")
    a("P0noinit:")
    a("""v_lshrrev_b32 v3, 3, v2
v_lshrrev_b32 v4, 4, v2
v_and_b32 v5, 7, v2
v_xor_b32 v5, v5, v4
v_lshlrev_b32 v10, 13, v3
v_lshl_add_u32 v10, v5, 4, v10
v_xor_b32 v11, 64, v10
v_and_b32 v5, 15, v2
v_lshrrev_b32 v6, 1, v5
v_xor_b32 v6, v6, v4
v_and_b32 v7, 1, v2
v_mul_u32_u24 v8, 896, v4
v_lshl_add_u32 v12, v7, 4, v8
v_lshl_add_u32 v13, v6, 5, v12
v_xor_b32 v6, 4, v6
v_lshl_add_u32 v14, v6, 5, v12
v_mov_b32 v9, 0x40000000
v_cmp_gt_u32 vcc, 7, v6
s_nop 1
v_cndmask_b32 v14, v9, v14, vcc
v_xor_b32 v6, 4, v6
v_cmp_gt_u32 vcc, 7, v6
s_nop 1
v_cndmask_b32 v13, v9, v13, vcc
s_mul_i32 s32, s22, 224*8192
s_lshl_b32 s33, s20, 9
s_add_u32 s32, s32, s33
s_mul_i32 s34, s23, 112*8192
s_add_u32 s34, s34, s33
s_mul_i32 s35, s20, 256*896
s_mul_i32 s36, s23, 224
s_add_u32 s35, s35, s36
s_and_b32 s37, s17, 1
s_cmp_eq_u32 s37, 0
s_cselect_b64 vcc, -1, 0
v_cndmask_b32 v15, v11, v10, vcc
s_lshr_b32 s37, s17, 1
s_cmp_eq_u32 s37, 0
s_cselect_b64 vcc, -1, 0
v_cndmask_b32 v16, v14, v13, vcc
s_lshl_b32 s37, s17, 16
s_add_u32 s32, s32, s37
s_add_u32 s34, s34, s37
s_mul_i32 s37, s17, 3584
s_add_u32 s35, s35, s37
s_lshl_b32 s38, s17, 10
s_cmp_ge_u32 s17, 2
s_cselect_b32 s39, 0x40000000, 0
s_add_u32 s39, s39, s34""")
    CH = 45056
    def issue(chunk, isB):
        buf = (chunk % 3)*CH
        for ii in range(7):
            a(f"s_add_u32 m0, s38, {buf + ii*4096}\ns_add_u32 s37, s32, {ii*4*65536 + chunk*128}\nbuffer_load_dwordx4 v15, {ro}, s37 offen lds")
        for ii in range(4):
            if not isB:
                a(f"s_add_u32 m0, s38, {buf + 28672 + ii*4096}\ns_add_u32 s37, s{39 if ii == 3 else 34}, {ii*4*65536 + chunk*128}\nbuffer_load_dwordx4 v15, {co}, s37 offen lds")
            else:
                a(f"s_add_u32 m0, s38, {buf + 28672 + ii*4096}\ns_add_u32 s37, s35, {(ii*16 + chunk*64)*896}\nbuffer_load_dwordx4 v16, {co}, s37 offen lds")
    def wsum(v):
        for ctl in ("quad_perm:[1,0,3,2]", "quad_perm:[2,3,0,1]", "row_half_mirror", "row_mirror"):
            a(f"s_nop 1\nv_add_f32_dpp v{v}, v{v}, v{v} {ctl} row_mask:0xf bank_mask:0xf")
        a(f"""v_mov_b32 v214, v{v}
s_nop 1
v_permlane16_swap_b32 v214, v{v}
v_add_f32 v{v}, v{v}, v214
v_mov_b32 v214, v{v}
s_nop 1
v_permlane32_swap_b32 v214, v{v}
v_add_f32 v{v}, v{v}, v214""")
    def ln():
        a(f"""s_mov_b32 s52, 0x3B124925
s_mov_b32 s53, 0x3727C5AC
s_mul_i32 s54, s17, 2080
s_add_u32 s54, s54, {LLN}
v_lshlrev_b32 v215, 4, v2
v_add_u32 v215, s54, v215
s_waitcnt vmcnt(33)""")
        for r in range(2):
            b = 204 + 4*r; t = 232
            for i in range(4):
                a(f"v_lshlrev_b32 v{t+2*i}, 16, v{b+i}\nv_and_b32 v{t+1+2*i}, 0xffff0000, v{b+i}")
            a(f"v_add_f32 v213, v{t}, v{t+1}")
            for i in range(2, 8): a(f"v_add_f32 v213, v213, v{t+i}")
            wsum(213)
            a("v_mul_f32 v213, s52, v213")
            for i in range(8): a(f"v_sub_f32 v{t+i}, v{t+i}, v213")
            a(f"v_mul_f32 v213, v{t}, v{t}")
            for i in range(1, 8): a(f"v_fmac_f32 v213, v{t+i}, v{t+i}")
            a("v_mul_f32 v213, v213, v212")
            wsum(213)
            a("v_mov_b32 v214, s53\nv_fmac_f32 v214, s52, v213\nv_rsq_f32 v214, v214\ns_nop 0")
            for i in range(8): a(f"v_mul_f32 v{t+i}, v{t+i}, v214")
            for i in range(4): a(f"v_cvt_pk_bf16_f32 v{b+i}, v{t+2*i}, v{t+1+2*i}")
            a(f"ds_write_b128 v215, {vr(b,4)} offset:{r*1040}")
    def ln_out():
        a(f"""v_and_b32 v215, 7, v0
v_lshrrev_b32 v214, 3, v0
v_mul_u32_u24 v216, 1040, v215
v_add_u32 v216, {LLN}, v216
v_lshl_add_u32 v217, v214, 4, v216
v_lshrrev_b32 v213, 1, v214
v_lshl_add_u32 v218, v213, 5, v216
v_and_b32 v213, 1, v214
v_lshl_add_u32 v218, v213, 2, v218
ds_read_b128 v[220:223], v217
ds_read_b128 v[224:227], v217 offset:512
ds_read2_b32 v[228:229], v218 offset0:0 offset1:2
ds_read2_b32 v[230:231], v218 offset0:4 offset1:6
ds_read2_b32 v[232:233], v218 offset0:128 offset1:130
ds_read2_b32 v[234:235], v218 offset0:132 offset1:134
v_lshlrev_b32 v215, 4, v215
v_lshl_add_u32 v216, v214, 9, v215
v_lshl_add_u32 v217, v214, 8, v215
v_add_u32 v218, 16384, v216
v_add_u32 v219, 8192, v217
v_mov_b32 v213, {OOB}
v_cmp_gt_u32 vcc, 192, v0
s_lshr_b32 s52, s2, 2
s_mul_i32 s52, s52, 28672
v_cndmask_b32 v218, v213, v218, vcc
v_cndmask_b32 v219, v213, v219, vcc
s_and_b32 s53, s2, 3
s_lshl_b32 s54, s53, 7
s_add_u32 s54, s54, s52
s_add_u32 s54, s54, {XNAT}
s_and_b32 s55, s53, 1
s_lshl_b32 s55, s55, 7
s_add_u32 s52, s52, s55
s_lshr_b32 s53, s53, 1
s_mul_i32 s53, s53, 14336
s_add_u32 s52, s52, s53
s_add_u32 s52, s52, {XREC}
s_waitcnt lgkmcnt(0)
buffer_store_dwordx4 v[220:223], v216, {WS}, s54 offen sc1
buffer_store_dwordx4 v[224:227], v218, {WS}, s54 offen sc1
buffer_store_dwordx4 v[228:231], v217, {WS}, s52 offen sc1
buffer_store_dwordx4 v[232:235], v219, {WS}, s52 offen sc1""")
    def rdaddr():
        a("""v_lshrrev_b32 v4, 4, v2
v_and_b32 v5, 15, v2
v_lshrrev_b32 v6, 2, v5
v_and_b32 v7, 3, v5
v_lshl_add_u32 v6, v6, 3, v7
s_lshl_b32 s37, s17, 6
v_add_u32 v6, s37, v6
v_bfe_u32 v7, v6, 1, 3
v_xor_b32 v7, v7, v4
v_lshlrev_b32 v20, 7, v6
v_lshl_add_u32 v20, v7, 4, v20
v_xor_b32 v21, 64, v20
v_xor_b32 v22, 32, v20
v_add_u32 v22, 512, v22
v_xor_b32 v23, 64, v22
v_lshrrev_b32 v7, 1, v5
v_xor_b32 v7, v7, v4
v_lshlrev_b32 v24, 7, v5
v_lshl_add_u32 v24, v7, 4, v24
v_add_u32 v24, 28672, v24
v_xor_b32 v25, 64, v24
v_bfe_u32 v6, v2, 2, 2
v_lshl_add_u32 v7, v4, 3, v6
v_lshlrev_b32 v26, 8, v7
v_and_b32 v7, 3, v2
v_lshl_add_u32 v26, v7, 3, v26
v_add_u32 v26, 28672, v26
v_and_b32 v7, 1, v4
v_lshl_add_u32 v6, v7, 2, v6""")
        for t in range(7):
            a(f"v_xor_b32 v7, {t}, v6\nv_lshl_add_u32 v{27+t}, v7, 5, v26")
    ACC = 64; RA = 40; CB = 176
    def body(isB):
        for c in range(3): issue(c, isB)
        rdaddr()
        ln()
        for c in range(4):
            n = {0: 22, 1: 11 + 4, 2: 4 + 11, 3: 0}[c]
            a(f"s_waitcnt vmcnt({n}) lgkmcnt(0)\ns_barrier")
            if c == 0:
                ln_out()
                L = a.lab("P0ic")
                a(f"s_cmp_lt_u32 s2, 16\ns_cbranch_scc0 {L}\ns_cmp_eq_u32 s17, 0\ns_cbranch_scc0 {L}")
                lane0_atomic(a, DBG, "0", 8)
                a(f"{L}:")
            if c == 1: issue(3, isB)
            if c > 0:
                dl = CH if c < 3 else -2*CH
                for r in (list(range(20, 24)) + (list(range(27, 34)) if isB else [24, 25])):
                    a(f"v_add_u32 v{r}, {dl & 0xffffffff}, v{r}")
            for ks in range(2):
                for i in range(4):
                    a(f"ds_read_b128 {vr(RA+4*i,4)}, v{20 + 2*(i & 1) + ks} offset:{(i >> 1)*4096}")
                for t in range(7):
                    if not isB:
                        a(f"ds_read_b128 {vr(CB+4*t,4)}, v{24+ks} offset:{t*2048}")
                    else:
                        a(f"ds_read_b64_tr_b16 {vr(CB+4*t,2)}, v{27+t} offset:{ks*8192}")
                        a(f"ds_read_b64_tr_b16 {vr(CB+4*t+2,2)}, v{27+t} offset:{ks*8192 + 1024}")
                for t in range(7):
                    n = (6-t)*(2 if isB else 1)
                    a(f"s_waitcnt lgkmcnt({min(n,15)})")
                    for i in range(4):
                        d = ACC + (t*4 + i)*4
                        a(f"v_mfma_f32_16x16x32_bf16 {vr(d,4)}, {vr(RA+4*i,4)}, {vr(CB+4*t,4)}, {'0' if (c == 0 and ks == 0) else vr(d,4)}")
    a("s_cmp_eq_u32 s21, 0\ns_cbranch_scc0 P0gB")
    body(False)
    a(f"""s_mov_b32 s39, {SCALE}
s_mul_i32 s52, s20, {28*TILE_B}
s_mul_i32 s53, s23, {7*TILE_B}
s_add_u32 s52, s52, s53
s_add_u32 s52, s52, {ACAN}
s_mov_b32 s54, {TILE_B}
s_branch P0epi
P0gB:""")
    body(True)
    a(f"""s_mov_b32 s39, 1.0
s_mul_i32 s52, s20, {TILE_B}
s_mul_i32 s53, s23, {7*16*TILE_B}
s_add_u32 s52, s52, s53
s_add_u32 s52, s52, {BCAN}
s_mov_b32 s54, {16*TILE_B}
P0epi:
s_mul_i32 s53, s22, 7168
s_add_u32 s52, s52, s53
s_lshl_b32 s53, s17, 11
s_add_u32 s52, s52, s53
v_lshlrev_b32 v3, 4, v2
v_add_u32 v5, 1024, v3
s_cmp_eq_u32 s17, 3
s_cselect_b32 s53, {OOB}, 0
v_add_u32 v5, s53, v5
v_mov_b32 v6, 0
buffer_load_dword v7, v6, {DBG}, 0 offen offset:8 sc1
s_nop 3""")
    for t in range(7):
        for p in range(2):
            d0 = ACC + (t*4 + 2*p)*4
            for r in range(0, 8, 2): a(f"v_pk_mul_f32 {vr(d0+r,2)}, {vr(d0+r,2)}, s[38:39] op_sel:[0,1] op_sel_hi:[1,1]")
            for r in range(4): a(f"v_cvt_pk_bf16_f32 v{d0+r}, v{d0+2*r}, v{d0+2*r+1}")
            a(f"buffer_store_dwordx4 {vr(d0,4)}, v{3 if p == 0 else 5}, {WS}, s52 offen sc1")
        a("s_add_u32 s52, s52, s54")
    a(f"""s_waitcnt vmcnt(0)
s_mov_b32 s40, 0x100000
P0iw:
v_cmp_gt_u32 vcc, 16, v7
s_cbranch_vccz P0iok
buffer_load_dword v7, v6, {DBG}, 0 offen offset:8 sc1
s_waitcnt vmcnt(0)
s_sub_u32 s40, s40, 1
s_cbranch_scc0 P0iw
P0iok:
s_barrier
s_cmp_eq_u32 s17, 0
s_cbranch_scc0 P0done
s_lshl_b32 s52, s18, 7
s_add_u32 s52, s52, {ABCNT}
s_lshr_b32 s53, s2, 4
s_lshl_b32 s53, s53, 7
s_add_u32 s53, s53, {LCNT}""")
    lane0_atomic(a, WS, "s52")
    a(f"buffer_atomic_add v4, v5, {WS}, s53 offen\nP0done:")
    trace(a, "s_lshl_b32 s98, s2, 3", slot=4)
```

```python
from asmlib import *
from layout import ACAN, BCAN, XREC, VOOP, VOMEM, MEMALL, MR, PR, CNT, TILE_B, ABCNT, LCNT, VPROG, PROG
FUSED = False
WS = "s[8:11]"
FLGM = CNT + 0x8000
FLGP = CNT + 0xA000
OOB = 0x40000000
sCU, sW, sS_, sBUD = 16, 17, 18, 19
sMc, sMn, sP, sPp, sVO, sX, sVM, sVMp, sMA, sCN, sT0, sT1, sT2, sB, sFM, sFP = range(20, 36)
sX1, sPub, sX3, sVO2 = 36, 37, 38, 39
vL16, vM0, vIdx, vT, vT2, vZ, vStep, vFR, vFW, vF0, vPoi = 2, 3, 10, 11, 12, 13, 14, 15, 16, 17, 20
vTW, vSW, vKM, vAL, vSX, vSM, vP0, vPM, vMask, vKM3 = 21, 22, 23, 24, 25, 26, 27, 28, 29, 30
vPx, vPm, vRW, vRR, vMP, vBL, vTch, vMA0, vMA1, vCnt, vFRP = 21, 22, 23, 24, 25, 26, 27, 28, 29, 30, 31
MEMR = 32
TACC, XOP, ASTG, SACC, SMX, TFR = 60, 88, (144, 152), 160, 32, 136
VACC, VOX, VOM, PRG, PACC, BSTG = 60, 92, 124, 140, 152, (160, 168, 176, 184)
LM, LT, LS, LA = 0, 8192, 16384, 24576
LR, LB = 8192, 16384
STAMP = ABS = SAME = False
OPT = dict(fp=2, fm=2, s1=5, o2=20, s2=4, pfx=0, pfw=0, fk=3, fs=15, lead=2, vw=0, mall=1, ns=6)
PRE = ''
def vr(b, n): return f"v[{b}:{b+n-1}]"
def ar(b, n): return f"a[{b}:{b+n-1}]"
def smf(a, d, A, B): a(f"v_smfmac_f32_16x16x64_bf16 {vr(d,4)}, {vr(A,4)}, {B}, v{vIdx}")
def ureg(u, vbase): return ("a", u*8) if u < 32 else ("v", vbase + (u-32)*8)
def uop(u, vbase):
    p, b = ureg(u, vbase); return f"{p}[{b}:{b+7}]"
def Aop(t, k): return uop(t*7 + k, 176)
def Bop(t, k): return uop(k*8 + t, 192)
def zero(a, *rs):
    for b, n in rs:
        for r in range(b, b+n): a(f"v_mov_b32 v{r}, 0")
def st(a, i):
    if STAMP: a(f"{'s_memrealtime' if ABS else 's_memtime'} s[{50+2*i}:{51+2*i}]")
def st_acc(a, used):
    if not STAMP: return
    a("s_waitcnt lgkmcnt(0)")
    if ABS:
        L = a.lab("Labs")
        a(f"s_cmp_lg_u32 s{sS_}, 31\ns_cbranch_scc1 {L}")
        for i in used: a(f"s_mov_b32 s{72+i}, s{50+2*i}")
        a(f"{L}:"); return
    prev = 70
    for i in used:
        a(f"s_sub_u32 s71, s{50+2*i}, s{prev}\ns_add_u32 s{72+i}, s{72+i}, s71"); prev = 50 + 2*i
    a(f"s_mov_b32 s70, s{prev}")

def trace_a(a, expr, slot):
    import asmlib
    if not asmlib.TRACE: return
    a(f"""s_memrealtime s[96:97]
{expr}
s_add_u32 s98, s98, {asmlib.TR + slot}
s_waitcnt lgkmcnt(0)
v_mov_b32 v{vT2}, s96
buffer_store_dword v{vT2}, v{vZ}, s[8:11], s98 offen""")

class LG:
    def __init__(s, a): s.a = a; s.q = []
    def op(s, txt, tag=None): s.a(txt); s.q.append(tag)
    def wait(s, tag):
        if tag not in s.q: return
        i = len(s.q) - 1 - s.q[::-1].index(tag)
        n = len(s.q) - 1 - i
        s.a(f"s_waitcnt lgkmcnt({min(n, 15)})")
        if n <= 15: s.q = s.q[i+1:]
    def all(s): s.a("s_waitcnt lgkmcnt(0)"); s.q = []

def sel(a, dst, cond_lt, vsrc_cmp, vtrue, other=OOB):
    a(f"v_mov_b32 v45, {other}\nv_cmp_gt_u32 vcc, {cond_lt}, v{vsrc_cmp}\ns_nop 1\nv_cndmask_b32 v{dst}, v45, v{vtrue}, vcc")

def setup(a):
    a(f"""
v_lshrrev_b32 v1, 6, v0
s_nop 0
v_readfirstlane_b32 s{sW}, v1
v_and_b32 v1, 63, v0
v_lshlrev_b32 v{vL16}, 4, v1
s_lshl_b32 s{sT0}, s{sW}, 1""")
    for k in range(7):
        a(f"""s_add_u32 s{sT1}, s{sT0}, {k}
s_cmp_ge_u32 s{sT1}, 7
s_cselect_b32 s{sT2}, 7, 0
s_sub_u32 s{sT1}, s{sT1}, s{sT2}
s_lshl_b32 s{sT1}, s{sT1}, 10
v_add_u32 v{vM0+k}, s{sT1}, v{vL16}""")
    a(f"""
v_lshrrev_b32 v40, 4, v1
v_and_b32 v41, 15, v1
v_lshrrev_b32 v42, 3, v1
v_and_b32 v43, 7, v1
v_mov_b32 v{vIdx}, 0x44444444
v_mov_b32 v44, 0xeeeeeeee
v_and_b32 v45, 2, v1
v_cmp_ne_u32 vcc, 0, v45
s_nop 1
v_cndmask_b32 v{vIdx}, v{vIdx}, v44, vcc
v_mov_b32 v{vZ}, 0
v_mov_b32 v{vStep}, 1
v_mov_b32 v{vPoi}, -1
; v46 = (4*(i>>1) + (i&1))*16 ; v47 = v46 + (q&1)*32
v_lshrrev_b32 v44, 1, v42
v_lshlrev_b32 v46, 6, v44
v_and_b32 v45, 1, v42
v_lshl_add_u32 v46, v45, 4, v46
v_and_b32 v45, 1, v43
v_lshl_add_u32 v47, v45, 5, v46
s_lshl_b32 s{sT1}, s{sW}, 4
v_add_u32 v44, s{sT1}, v41
v_subrev_u32 v45, 56, v44
v_cmp_gt_u32 vcc, 56, v44
s_nop 1
v_cndmask_b32 v44, v45, v44, vcc
v_lshlrev_b32 v44, 2, v44
s_lshl_b32 s{sT1}, s{sCU}, 8
v_add_u32 v{vFR}, s{sT1}, v44
s_mov_b32 s{sS_}, 0
s_mov_b32 s{sBUD}, 0x100000
s_mov_b32 s{sMc}, {MR}
s_mov_b32 s{sMn}, {MR+8192}
s_mov_b32 s{sP}, {PR}
s_mov_b32 s{sPp}, {PR+16384}
s_mov_b32 s{sFM}, {FLGM}
s_mov_b32 s{sFP}, {FLGP}
s_mov_b32 s{sMA}, {MEMALL}
s_sub_u32 s{sB}, s{sCU}, 16""")
    for k in range(7):
        a(f"v_lshlrev_b32 v{48+k}, 1, v{vM0+k}\nv_sub_u32 v{48+k}, v{48+k}, v{vL16}")

def p0_wait(a, vaddr_code, soff, target):
    if not FUSED: return
    L, Lo = a.lab("Lpw"), a.lab("Lpo")
    a(f"""{vaddr_code}
s_mov_b32 s{sT2}, {soff}
{L}:
buffer_load_dword v45, v44, {WS}, s{sT2} offen sc1
s_waitcnt vmcnt(0)
v_cmp_gt_u32 vcc, {target}, v45
s_cbranch_vccz {Lo}
s_sleep 1
s_sub_u32 s{sBUD}, s{sBUD}, 1
s_cbranch_scc0 {L}
s_mov_b32 s{sBUD}, 0
{Lo}:
s_barrier""")

def setup_A(a):
    a(f"""
v_lshlrev_b32 v44, 6, v40
v_bfe_u32 v45, v41, 2, 1
v_lshl_add_u32 v44, v45, 5, v44
v_bfe_u32 v45, v41, 3, 1
v_lshl_add_u32 v44, v45, 2, v44
v_bfe_u32 v45, v41, 1, 1
v_lshl_add_u32 v44, v45, 3, v44
v_and_b32 v45, 1, v41
v_lshl_add_u32 v44, v45, 1, v44
s_lshl_b32 s{sT1}, s{sW}, 11
s_add_u32 s{sT1}, s{sT1}, {LT}
v_add_u32 v{vTW}, s{sT1}, v44
v_add_u32 v{vSM}, s{sT1}, v{vL16}
v_lshlrev_b32 v44, 2, v1
v_add_u32 v44, s{sT1}, v44
ds_write_b32 v44, v{vZ} offset:1792
v_lshlrev_b32 v44, 4, v40
v_lshrrev_b32 v45, 1, v41
v_add_u32 v44, v44, v45
v_mul_u32_u24 v44, 112, v44
v_and_b32 v45, 1, v41
v_lshl_add_u32 v44, v45, 2, v44
s_lshl_b32 s{sT1}, s{sW}, 3
s_add_u32 s{sT1}, s{sT1}, {LS}
v_add_u32 v{vSW}, s{sT1}, v44
v_mul_u32_u24 v44, 112, v1
v_add_u32 v{vSX}, {LS}, v44
v_bfe_u32 v45, v41, 1, 2
v_lshlrev_b32 v44, 6, v45
v_and_b32 v45, 1, v40
v_lshl_add_u32 v44, v45, 5, v44
v_and_b32 v45, 1, v41
v_lshl_add_u32 v44, v45, 4, v44
s_mul_i32 s{sT1}, s{sW}, 1792
v_add_u32 v44, s{sT1}, v44
v_add_u32 v{vKM3}, 1536, v44
v_lshrrev_b32 v45, 1, v40
v_lshl_add_u32 v{vKM}, v45, 8, v44
s_mul_i32 s{sT1}, s{sW}, {TILE_B}
s_add_u32 s{sT1}, s{sT1}, {LA}
v_add_u32 v{vAL}, s{sT1}, v{vL16}
; vP0 = (h>>2)*4096 + (h&3)*512 + v47 + (2*((q>>1)&1) + (q>>2))*4
v_bfe_u32 v45, v43, 1, 1
v_lshl_add_u32 v44, v45, 3, v47
v_lshrrev_b32 v45, 2, v43
v_lshl_add_u32 v44, v45, 2, v44
s_lshr_b32 s{sT1}, s{sCU}, 2
s_lshl_b32 s{sT1}, s{sT1}, 12
s_and_b32 s{sT0}, s{sCU}, 3
s_lshl_b32 s{sT2}, s{sT0}, 9
s_add_u32 s{sT2}, s{sT2}, s{sT1}
v_add_u32 v{vP0}, s{sT2}, v44
; vPM = (h>>2)*4096 + 2048 + (q>>1)*256 + v46 + (h&1)*32 + (2*(q&1) + ((h>>1)&1))*4   (q<4)
v_lshrrev_b32 v45, 1, v43
v_lshl_add_u32 v44, v45, 8, v46
v_and_b32 v45, 1, v43
v_lshl_add_u32 v44, v45, 3, v44
s_and_b32 s{sT2}, s{sT0}, 1
s_lshl_b32 s{sT2}, s{sT2}, 5
s_add_u32 s{sT1}, s{sT1}, s{sT2}
s_lshr_b32 s{sT2}, s{sT0}, 1
s_lshl_b32 s{sT2}, s{sT2}, 2
s_add_u32 s{sT1}, s{sT1}, s{sT2}
s_add_u32 s{sT1}, s{sT1}, 2048
v_add_u32 v44, s{sT1}, v44""")
    sel(a, vPM, 4, 43, 44)
    a(f"""v_cndmask_b32 v{vMask}, 0, 1.0, vcc
v_lshlrev_b32 v44, 7, v1
s_lshl_b32 s{sT1}, s{sCU}, 2
v_add_u32 v44, s{sT1}, v44""")
    sel(a, vFW, 14, 1, 44)
    a(f"""s_mul_i32 s{sT1}, s{sW}, 3584
s_add_u32 s{sX}, s{sT1}, {XREC}
s_add_u32 s{sX1}, s{sX}, 14336
s_lshr_b32 s{sT0}, s{sCU}, 1
s_and_b32 s{sT1}, s{sCU}, 1
s_add_u32 s{sT1}, s{sT1}, 1
s_cmp_eq_u32 s{sCU}, 7
s_cselect_b32 s{sT1}, 0, s{sT1}
s_cmp_eq_u32 s{sT0}, s{sW}
s_cselect_b32 s{sPub}, s{sT1}, 0""")
    p0_wait(a, f"s_lshl_b32 s{sT0}, s{sCU}, 8\nv_mov_b32 v44, s{sT0}", ABCNT, 8)
    a(f"""s_mul_i32 s{sT0}, s{sCU}, {28*TILE_B}
s_mul_i32 s{sT1}, s{sW}, {7*TILE_B}
s_add_u32 s{sT0}, s{sT0}, s{sT1}
s_add_u32 s{sT0}, s{sT0}, {ACAN}
s_mul_i32 s{sT2}, s{sW}, {TILE_B}
s_add_u32 s{sT2}, s{sT2}, {LA}""")
    for t in range(7):
        for k in range(7):
            if t < 6:
                p, b = ureg(t*7 + k, 176)
                a(f"buffer_load_dwordx4 {p}[{b}:{b+3}], v{48+k}, {WS}, s{sT0} offen sc1")
                a(f"buffer_load_dwordx4 {p}[{b+4}:{b+7}], v{48+k}, {WS}, s{sT0} offen offset:1024 sc1")
            else:
                a(f"s_add_u32 m0, s{sT2}, {k*2048}\ns_nop 0")
                a(f"buffer_load_dwordx4 v{48+k}, {WS}, s{sT0} offen sc1 lds")
                a(f"buffer_load_dwordx4 v{48+k}, {WS}, s{sT0} offen offset:1024 sc1 lds")
        a(f"s_add_u32 s{sT0}, s{sT0}, {TILE_B}\ns_waitcnt vmcnt(30)")
    zero(a, (TACC, 28), (SACC, 12))
    a("s_waitcnt vmcnt(0)")
    p0_wait(a, "v_lshlrev_b32 v44, 7, v41", LCNT, 16)

def setup_B(a):
    a(f"""
s_lshl_b32 s{sT1}, s{sW}, 12
v_add_u32 v{vPx}, s{sT1}, v{vL16}
v_and_b32 v44, 511, v{vL16}
s_add_u32 s{sT1}, s{sT1}, 2048
v_add_u32 v{vPm}, s{sT1}, v44
v_lshlrev_b32 v44, 7, v40
v_lshl_add_u32 v44, v41, 2, v44
s_lshl_b32 s{sT1}, s{sW}, 9
s_add_u32 s{sT1}, s{sT1}, {LR}
v_add_u32 v{vRW}, s{sT1}, v44
s_and_b32 s{sT0}, s{sW}, 1
s_lshl_b32 s{sT1}, s{sT0}, 11
s_add_u32 s{sT1}, s{sT1}, {LR}
v_lshlrev_b32 v44, 3, v1
v_add_u32 v{vRR}, s{sT1}, v44
v_lshrrev_b32 v45, 1, v43
v_lshl_add_u32 v44, v45, 2, v47
s_lshl_b32 s{sT1}, s{sB}, 1
s_add_u32 s{sT1}, s{sT1}, s{sT0}
s_lshl_b32 s{sT1}, s{sT1}, 8
v_add_u32 v{vMP}, s{sT1}, v44
s_lshl_b32 s{sT1}, s{sW}, 15
s_add_u32 s{sT1}, s{sT1}, {LB}
v_add_u32 v{vBL}, s{sT1}, v{vL16}
v_lshlrev_b32 v44, 7, v1
s_lshl_b32 s{sT1}, s{sB}, 11
v_add_u32 v44, s{sT1}, v44""")
    sel(a, vTch, 16, 1, 44)
    a(f"""s_cmp_eq_u32 s{sB}, 0
s_cselect_b32 s{sT1}, 0, {OOB}
v_add_u32 v{vMA0}, s{sT1}, v{vM0}
v_add_u32 v{vMA1}, s{sT1}, v{vM0+1}
v_lshlrev_b32 v44, 8, v1
s_lshl_b32 s{sT1}, s{sB}, 2
s_add_u32 s{sT1}, s{sT1}, s{sW}
s_lshl_b32 s{sT1}, s{sT1}, 2
v_add_u32 v44, s{sT1}, v44""")
    sel(a, vFW, 30, 1, 44)
    a(f"""; vFRP = b*128 + (4w + (lane&3))*4
v_and_b32 v44, 3, v1
v_lshlrev_b32 v44, 2, v44
s_lshl_b32 s{sT1}, s{sB}, 7
s_lshl_b32 s{sT2}, s{sW}, 4
s_add_u32 s{sT1}, s{sT1}, s{sT2}
v_add_u32 v{vFRP}, s{sT1}, v44
s_lshl_b32 s{sT0}, s{sB}, 15
s_add_u32 s{sVO}, s{sT0}, {VOOP}
s_add_u32 s{sVO2}, s{sVO}, 16384
s_lshl_b32 s{sT0}, s{sB}, 13
s_lshl_b32 s{sT1}, s{sW}, 10
s_add_u32 s{sT0}, s{sT0}, s{sT1}
s_add_u32 s{sVM}, s{sT0}, {VOMEM}
s_mov_b32 s{sVMp}, {OOB}
s_mov_b32 s{sMA}, {MEMALL}
s_mov_b32 s{sCN}, {CNT}
s_nop 0""")
    p0_wait(a, "v_lshlrev_b32 v44, 8, v41", ABCNT + 128, 8)
    a(f"""s_lshl_b32 s{sT2}, s{sW}, 15
s_add_u32 s{sT2}, s{sT2}, {LB}
v_mov_b32 v45, {OOB}
v_cmp_eq_u32 vcc, 0, v1
v_mov_b32 v{vMA1}, 1
s_nop 0
v_cndmask_b32 v{vMA0}, v45, v{vZ}, vcc""")
    for t in range(8):
        a(f"""s_mul_i32 s{sT0}, s{sB}, {32*TILE_B}
s_mul_i32 s{sT1}, s{sW}, {4*TILE_B}
s_add_u32 s{sT0}, s{sT0}, s{sT1}
s_add_u32 s{sT0}, s{sT0}, {BCAN + ((t >> 2)*16 + (t & 3))*TILE_B}""")
        for k in range(7):
            u = k*8 + t
            if u < 40:
                p, b = ureg(u, 192)
                a(f"buffer_load_dwordx4 {p}[{b}:{b+3}], v{48+k}, {WS}, s{sT0} offen sc1")
                a(f"buffer_load_dwordx4 {p}[{b+4}:{b+7}], v{48+k}, {WS}, s{sT0} offen offset:1024 sc1")
            else:
                a(f"s_add_u32 m0, s{sT2}, {(u-40)*2048}\ns_nop 0")
                a(f"buffer_load_dwordx4 v{48+k}, {WS}, s{sT0} offen sc1 lds")
                a(f"buffer_load_dwordx4 v{48+k}, {WS}, s{sT0} offen offset:1024 sc1 lds")
        a("s_waitcnt vmcnt(30)")
    zero(a, (VACC, 32), (VOM, 16), (PACC, 8))
    a("s_waitcnt vmcnt(0)")

def retry(a, Lretry, Lpoll, Laccept):
    pre = f"s_add_u32 s{82 + 'spm'.index(Lretry[1])}, s{82 + 'spm'.index(Lretry[1])}, 1" if STAMP else ""
    a(f"""{Lretry}:
{pre}
s_sub_u32 s{sBUD}, s{sBUD}, 1
s_cbranch_scc0 {Lpoll}
s_mov_b32 s{sBUD}, 0
s_branch {Laccept}""")

def flag_wait(a, vaddr, soff, mask):
    Lf, Lg = a.lab("Lfp"), a.lab("Lfg")
    a(f"s_mov_b64 exec, {mask}")
    K = OPT['fk']
    for i in range(K):
        a(f"buffer_load_dword v{vF0+i}, v{vaddr}, {WS}, s{soff} offen sc1")
        if i < K-1: a(f"s_nop {OPT['fs']}")
    a(f"{Lf}:")
    for i in range(K):
        a(f"""s_waitcnt vmcnt({K-1})
v_cmp_gt_u32 vcc, v{vStep}, v{vF0+i}
s_cbranch_vccz {Lg}
buffer_load_dword v{vF0+i}, v{vaddr}, {WS}, s{soff} offen sc1""")
    a(f"""s_sub_u32 s{sBUD}, s{sBUD}, 1
s_cbranch_scc0 {Lf}
s_mov_b32 s{sBUD}, 0
{Lg}:
s_mov_b64 exec, -1""")

def mem_poll(a, cold, spec, acc, after=()):
    Lp, Lr, La, Lr2, La2 = (a.lab(x) for x in ("Lmp", "Lmr", "Lma", "Lmr2", "Lma2"))
    m = MEMR
    ld = f"""buffer_load_dwordx4 {vr(m,4)}, v{vM0}, {WS}, s{sMc} offen sc1
buffer_load_dwordx4 {vr(m+4,4)}, v{vM0+1}, {WS}, s{sMc} offen sc1"""
    nv = sum(x.count("buffer_") for x in after)
    if after:
        a(ld)
        for x in after: a(x)
        a(f"s_waitcnt vmcnt({nv})\n{Lp}w:")
        cold.append(lambda: a(f"{Lp}:\n{ld}\ns_waitcnt vmcnt(0)\ns_branch {Lp}w"))
    else:
        a(f"{Lp}:\n{ld}\ns_waitcnt vmcnt(0)")
    a(f"""v_max_u32 v{vT}, v{m+3}, v{m+7}
v_cmp_eq_u32 vcc, -1, v{vT}
s_cbranch_vccnz {Lr}
{La}:""")
    st(a, 1)
    a(f"""ds_write_b128 v{vM0}, {vr(m,4)} offset:{LM}
ds_write_b128 v{vM0+1}, {vr(m+4,4)} offset:{LM}""")
    chk = [f"v_max3_u32 v{vT}, v{m}, v{m+1}, v{m+2}", f"v_max3_u32 v{vT}, v{vT}, v{m+4}, v{m+5}",
           f"v_max_u32 v{vT}, v{vT}, v{m+6}\nv_cmp_eq_u32 vcc, -1, v{vT}"]
    for i in range(max(4, len(spec))):
        if i < len(spec): spec[i]()
        if i < 3: a(chk[i])
    a(f"s_cbranch_vccnz {Lr2}\n{La2}:\ns_waitcnt lgkmcnt(0)\ns_barrier")
    def c():
        retry(a, Lr, Lp, La)
        a(f"{Lr2}:\ns_sub_u32 s{sBUD}, s{sBUD}, 1\ns_cbranch_scc1 {Lr2}x\ns_nop 15")
        if spec: zero(a, acc)
        a(f"s_branch {Lp}\n{Lr2}x:\ns_mov_b32 s{sBUD}, 0\ns_branch {La2}")
    cold.append(c)

def xs_loads(a):
    for t in range(2):
        for idx in range(4):
            a(f"buffer_load_dwordx4 {vr(XOP+16*t+4*idx,4)}, v{vL16}, {WS}, s{(sX, sX1)[t]} offen offset:{idx*1024} sc1")

def loop_A(a, role, SC):
    cold = []
    Ltop = a.lab("Ltop")
    m = MEMR
    lg = LG(a)
    def a6h(k, h):
        b = ASTG[k & 1] + 4*h
        lg.op(f"ds_read_b128 {vr(b,4)}, v{vAL} offset:{k*2048+1024*h}", f"a{k}" if h else None)
    def a6(k): a6h(k, 0); a6h(k, 1)
    xs_loads(a)
    a6(0); a6(1); lg.all()
    a(f"{Ltop}:")
    st(a, 0)
    def T(t, k): smf(a, TACC+4*t, m+4*k, Aop(t, k) if t < 6 else vr(ASTG[k & 1], 8))
    NS = OPT['ns']
    o0 = [6, 0, 1, 2, 3, 4, 5]
    mem_poll(a, cold, [lambda t=t: T(t, 0) for t in o0[:NS]], (TACC, 28))
    st(a, 2)
    def rdm(k): lg.op(f"ds_read_b128 {vr(m+4*k,4)}, v{vM0+k} offset:{LM}", f"m{k}")
    def epi(t, part):
        b = TACC + 4*t
        if part == 0: a(f"v_add_f32 v{b}, v{b}, v{b+2}")
        if part == 1: a(f"v_add_f32 v{b+1}, v{b+1}, v{b+3}")
        if part == 2: a(f"v_cvt_pk_bf16_f32 v{b+2}, v{b}, v{b+1}")
        if part == 3: lg.op(f"ds_write_b16 v{vTW}, v{b+2} offset:{256*t}")
        if part == 4: lg.op(f"ds_write_b16_d16_hi v{vTW}, v{b+2} offset:{256*t+16}", f"w{t}")
    fill = []
    if role == 'f':
        fill = [f"buffer_store_dword v{vPoi}, v{vP0}, {WS}, s{sPp} offen {SC}",
                f"buffer_store_dword v{vPoi}, v{vP0}, {WS}, s{sPp} offen offset:256 {SC}",
                f"buffer_store_dword v{vPoi}, v{vPM}, {WS}, s{sPp} offen {SC}"]
    km = [f"ds_read_b128 {vr(XOP+32+4*idx,4)}, v{vKM if idx < 3 else vKM3} offset:{LM + (idx*512 if idx < 3 else 0)}" for idx in range(4)]
    Lm1, Lm2 = a.lab("Lma"), a.lab("Lmb")
    pubc = f"""s_cmp_lg_u32 s{sPub}, 0
s_cbranch_scc1 {Lm1}
{Lm2}:"""
    cold.append(lambda: a(f"""{Lm1}:
s_cmp_eq_u32 s{sPub}, 1
s_cbranch_scc0 {Lm1}b
buffer_store_dwordx4 {vr(m,4)}, v{vM0}, {WS}, s{sMA} offen sc1
s_branch {Lm2}
{Lm1}b:
buffer_store_dwordx4 {vr(m+4,4)}, v{vM0+1}, {WS}, s{sMA} offen sc1
s_branch {Lm2}"""))
    pre = [lambda k=k: rdm(k) for k in range(2, 7)] + [lambda: a6h(2, 0), lambda: a6h(2, 1), lambda: a6h(3, 0), lambda: a6h(3, 1), lambda: a(pubc)]
    pre.pop(0)(); pre.pop(0)()
    for t, k in [(t, 0) for t in o0[NS:]] + [(t, 1) for t in o0]:
        T(t, k)
        if pre: pre.pop(0)()
    assert not pre
    lg.wait("m6")
    def S(ks):
        for j in range(3): smf(a, SACC+4*j, TFR+4*ks, vr(XOP+16*j+8*ks, 8))
    for t in range(6):
        for k in range(2, 7):
            T(t, k)
            if t >= 1 and k <= 3:
                if t + 3 < 7: a6h(t+3, k-2)
                else: a("s_nop 0")
                if t >= 2 and k == 2: epi(t-2, 4)
                elif k == 2: a("s_nop 0")
            if t >= 1 and k >= 4: epi(t-1, k-4)
            if t == 5 and k >= 5: epi(6, k-5)
            if t == 5 and k == 3: lg.op(f"ds_read_b128 {vr(TFR,4)}, v{vSM}", "t0")
            if t == 0:
                if km: lg.op(km.pop(0))
                elif fill: a(fill.pop(0))
            elif fill and k == 3: a(fill.pop(0))
        if t < 5:
            lg.wait(f"a{t+2}")
            T(6, t+2)
            if t >= 1: epi(t-1, 3)
    st(a, 3)
    lg.wait("t0")
    Sf = [[lambda: epi(4, 3), lambda: epi(6, 2)], [lambda: epi(4, 4), lambda: epi(6, 3)], [lambda: epi(6, 4)]]
    for j in range(3):
        smf(a, SACC+4*j, TFR, vr(XOP+16*j, 8))
        for f in Sf[j]: f()
    for p in range(5): epi(5, p)
    lg.op(f"ds_read_b128 {vr(TFR+4,4)}, v{vSM} offset:1024", "t1")
    lg.wait("t1")
    st(a, 4)
    S(1)
    a("s_nop 5")
    for j in range(3):
        b = SACC + 4*j
        a(f"v_pk_add_f32 {vr(b,2)}, {vr(b,2)}, {vr(b+2,2)}")
        lg.op(f"ds_write2_b32 v{vSW}, v{b}, v{b+1} offset0:{8*j} offset1:{224+8*j}")
    flag = f"buffer_store_dword v{vStep}, v{vFW}, {WS}, s{sFP} offen {SC}"
    if role == 'f' and OPT['fp'] == 0: a(flag)
    lg.all(); a("s_barrier")
    st(a, 5)
    upd = f"""s_add_u32 s{sS_}, s{sS_}, 1
s_xor_b32 s{sMc}, s{sMc}, 8192
s_xor_b32 s{sP}, s{sP}, 16384
s_xor_b32 s{sPp}, s{sPp}, 16384
s_add_u32 s{sMA}, s{sMA}, 8192"""
    xadv = "\n".join(f"s_add_u32 s{r}, s{r}, {0 if SAME else 28672}" for r in (sX, sX1))
    def house():
        zero(a, (TACC, 28), (SACC, 12))
        a6(0); a6(1); lg.all()
        a(xadv)
    if role != 'f':
        house()
        a("s_barrier")
        st(a, 6); st(a, 7)
    else:
        S = SMX; E = SMX + 8
        for j in range(6): a(f"ds_read_b128 {vr(S+4*j,4)}, v{vSX} offset:{16*j}")
        if OPT['fp'] == 1: a(flag)
        for j in range(3):
            b = S + 8*j
            a(f"""s_waitcnt lgkmcnt({4-2*j})
v_pk_add_f32 {vr(b,2)}, {vr(b,2)}, {vr(b+2,2)}
v_pk_add_f32 {vr(b+4,2)}, {vr(b+4,2)}, {vr(b+6,2)}
v_pk_add_f32 {vr(S+2*j,2)}, {vr(b,2)}, {vr(b+4,2)}""")
            if j == 0 and OPT['fp'] == 2: a(flag)
            if j == 1: a(f"v_max3_f32 v{S+6}, v{S}, v{S+1}, v{S+2}")
        st(a, 6)
        if OPT['fp'] == 3: a(flag)
        a(f"""v_max3_f32 v{S+6}, v{S+6}, v{S+3}, v{S+4}
v_max_f32 v{S+6}, v{S+6}, v{S+5}
s_nop 1
v_max_f32_dpp v{S+6}, v{S+6}, v{S+6} quad_perm:[1,0,3,2] row_mask:0xf bank_mask:0xf
s_nop 1
v_max_f32_dpp v{S+6}, v{S+6}, v{S+6} quad_perm:[2,3,0,1] row_mask:0xf bank_mask:0xf
s_nop 1
v_max_f32_dpp v{S+6}, v{S+6}, v{S+6} row_half_mirror row_mask:0xf bank_mask:0xf""")
        if OPT['fp'] == 4: a(flag)
        a(f"""v_pk_add_f32 {vr(S,2)}, {vr(S,2)}, {vr(S+6,2)} op_sel_hi:[1,0] neg_lo:[0,1] neg_hi:[0,1]
v_pk_add_f32 {vr(S+2,2)}, {vr(S+2,2)}, {vr(S+6,2)} op_sel_hi:[1,0] neg_lo:[0,1] neg_hi:[0,1]
v_pk_add_f32 {vr(S+4,2)}, {vr(S+4,2)}, {vr(S+6,2)} op_sel_hi:[1,0] neg_lo:[0,1] neg_hi:[0,1]
v_exp_f32 v{S}, v{S}
v_exp_f32 v{S+1}, v{S+1}
v_exp_f32 v{S+2}, v{S+2}
v_exp_f32 v{S+3}, v{S+3}
v_exp_f32 v{S+4}, v{S+4}
v_exp_f32 v{S+5}, v{S+5}
v_pk_add_f32 {vr(E,2)}, {vr(S,2)}, {vr(S+2,2)}
v_add_f32 v{E+2}, v{S+4}, v{S+5}
v_add_f32 v{E}, v{E}, v{E+1}
v_fma_f32 v{E}, v{E+2}, v{vMask}, v{E}
s_nop 1
v_add_f32_dpp v{E}, v{E}, v{E} quad_perm:[1,0,3,2] row_mask:0xf bank_mask:0xf
s_nop 1
v_add_f32_dpp v{E}, v{E}, v{E} quad_perm:[2,3,0,1] row_mask:0xf bank_mask:0xf
s_nop 1
v_add_f32_dpp v{E}, v{E}, v{E} row_half_mirror row_mask:0xf bank_mask:0xf
v_rcp_f32 v{E}, v{E}
s_nop 0
v_pk_mul_f32 {vr(S,2)}, {vr(S,2)}, {vr(E,2)} op_sel_hi:[1,0]
v_pk_mul_f32 {vr(S+2,2)}, {vr(S+2,2)}, {vr(E,2)} op_sel_hi:[1,0]
v_pk_mul_f32 {vr(S+4,2)}, {vr(S+4,2)}, {vr(E,2)} op_sel_hi:[1,0]
v_cvt_pk_bf16_f32 v{S}, v{S}, v{S+1}
buffer_store_dword v{S}, v{vP0}, {WS}, s{sP} offen {SC}
v_cvt_pk_bf16_f32 v{S+2}, v{S+2}, v{S+3}
buffer_store_dword v{S+2}, v{vP0}, {WS}, s{sP} offen offset:256 {SC}
v_cvt_pk_bf16_f32 v{S+4}, v{S+4}, v{S+5}
buffer_store_dword v{S+4}, v{vPM}, {WS}, s{sP} offen {SC}""")
        st(a, 7)
        a("s_barrier")
        house()
    a(f"s_cmp_eq_u32 s{sS_}, 62\ns_cbranch_scc1 Lrec_done")
    xs_loads(a)
    a(upd)
    st_acc(a, range(8))
    flag_wait(a, vFR, sFM, 0xffff)
    a(f"v_add_u32 v{vStep}, 1, v{vStep}\ns_branch {Ltop}")
    for c in cold: c()

def cnt_check(a, cold):
    Lok, Lr = a.lab("Lco"), a.lab("Lcr")
    a(f"v_cmp_gt_u32 vcc, 16, v{vCnt}\ns_cbranch_vccnz {Lr}\n{Lok}:")
    def c():
        a(f"""{Lr}:
buffer_load_dword v{vCnt}, v{vZ}, {WS}, s{sCN} offen sc1
s_waitcnt vmcnt(0)
v_cmp_gt_u32 vcc, 16, v{vCnt}
s_cbranch_vccz {Lok}
s_sleep 4
s_sub_u32 s{sBUD}, s{sBUD}, 1
s_cbranch_scc0 {Lr}
s_mov_b32 s{sBUD}, 0
s_branch {Lok}""")
    cold.append(c)

def vomem_gemm(a, w, blk1, blk2):
    m = MEMR
    lg = LG(a)
    for k in (5, 2, 3, 4, 6): lg.op(f"ds_read_b128 {vr(m+4*k,4)}, v{vM0+k} offset:{LM}", f"m{k}")
    def rd(u, h):
        b = BSTG[u % 4] + 4*h
        lg.op(f"ds_read_b128 {vr(b,4)}, v{vBL} offset:{(u-40)*2048+1024*h}", f"b{u}" if h else None)
    order = list(range(8))
    r, l = 8, 40
    while r < 40 or l < 56:
        for _ in range(2):
            if r < 40: order.append(r); r += 1
        if l < 56: order.append(l); l += 1
    pend = [(u, h) for u in range(40, 44) for h in range(2)]
    pos = {OPT['s1']*w: blk1, OPT['o2'] + OPT['s2']*w: blk2}
    for i, u in enumerate(order):
        k, t = u >> 3, u & 7
        if k >= 2: lg.wait(f"m{k}")
        if u >= 40: lg.wait(f"b{u}")
        smf(a, VACC+4*t, m+4*k, Bop(t, k) if u < 40 else vr(BSTG[u % 4], 8))
        if u >= 40 and u + 4 < 56: pend += [(u+4, 0), (u+4, 1)]
        if pend: rd(*pend.pop(0))
        for x in pos.get(i, []): a(x)
    a("s_nop 7")
    for t in range(8):
        b = VACC + 4*t
        a(f"v_pk_add_f32 {vr(b,2)}, {vr(b,2)}, {vr(b+2,2)}")
    for t in range(8):
        b = VACC + 4*t
        a(f"v_cvt_pk_bf16_f32 v{VOM + 8*(t >> 2) + (t & 3)}, v{b}, v{b+1}")

def loop_B(a, w, SC):
    role = 'f' if w >= 2 else 'n'
    cold = []
    Ltop = a.lab("Ltop")
    m = MEMR
    def vol(ct): return [f"buffer_load_dwordx4 {vr(VOX+16*ct+4*hh,4)}, v{vPx}, {WS}, s{(sVO, sVO2)[ct]} offen offset:{hh*1024} sc1" for hh in range(4)]
    a(f"buffer_load_dword v{vCnt}, v{vZ}, {WS}, s{sCN} offen sc1\ns_waitcnt vmcnt(0)")
    a(f"{Ltop}:")
    cnt_check(a, cold)
    st(a, 0)
    mem_poll(a, cold, [], None, [f"v_mov_b32 v{r}, 0" for r in list(range(PACC, PACC+8)) + list(range(VACC, VACC+32))])
    st(a, 2)
    if w == 0:
        Ltr = a.lab("Ltr")
        import asmlib
        if asmlib.TRACE:
            a(f"s_cmp_lg_u32 s{sB}, 1\ns_cbranch_scc1 {Ltr}")
            trace_a(a, f"s_lshl_b32 s98, s{sS_}, 2", 0x9000)
            a(f"s_memtime s[96:97]\ns_add_u32 s98, s98, 0x400\ns_waitcnt lgkmcnt(0)\nv_mov_b32 v{vT2}, s96\nbuffer_store_dword v{vT2}, v{vZ}, s[8:11], s98 offen")
            a(f"{Ltr}:")
    def vmst(so): return [f"buffer_store_dwordx4 {vr(VOM,4)}, v{vL16}, {WS}, s{so} offen sc1",
                          f"s_add_u32 s{sT0}, s{so}, 4096\nbuffer_store_dwordx4 {vr(VOM+8,4)}, v{vL16}, {WS}, s{sT0} offen sc1"]

    def skip_unless(cond, body):
        L = a.lab("Lsu")
        return [f"{cond}\ns_cbranch_scc0 {L}"] + body + [f"{L}:"]
    def mall(): return skip_unless(f"s_cmp_eq_u32 s{sB}, 0", [f"buffer_store_dwordx4 {vr(m,4)}, v{vM0}, {WS}, s{sMA} offen sc1",
                         f"buffer_store_dwordx4 {vr(m+4,4)}, v{vM0+1}, {WS}, s{sMA} offen sc1"] +
                         ([f"s_mov_b32 s{sT0}, {CNT+0x1080}\nbuffer_atomic_umax v{vStep}, v{vMA0}, {WS}, s{sT0} offen"] if w == 3 else []))
    class Lazy(list):
        def __init__(s, f): s.f = f
        def __iter__(s): return iter(s.f())
        def __bool__(s): return True
    def cntl(): return skip_unless(f"s_and_b32 s{sT0}, s{sS_}, 3\ns_cmp_eq_u32 s{sT0}, 3",
                       [f"s_add_u32 s{sCN}, s{sCN}, 128\nbuffer_load_dword v{vCnt}, v{vZ}, {WS}, s{sCN} offen sc1"])
    sig = []
    vomem_gemm(a, w, vol(0) + vmst(sVMp), vol(1) + cntl() + sig)
    st(a, 3)
    if STAMP and OPT['vw']: a("s_waitcnt vmcnt(0)")
    st(a, 4)
    flag_wait(a, vFRP, sFP, 15)
    st(a, 5)
    Lp, Lr, La, Lr2, La2 = (a.lab(x) for x in ("Lpp", "Lpr", "Lpa", "Lpr2", "Lpa2"))
    P = PRG
    flag = f"buffer_store_dword v{vStep}, v{vFW}, {WS}, s{sFM} offen {SC}"
    a(f"""{Lp}:
buffer_load_dwordx4 {vr(P,4)}, v{vPx}, {WS}, s{sP} offen sc1
buffer_load_dwordx4 {vr(P+4,4)}, v{vPx}, {WS}, s{sP} offen offset:1024 sc1
buffer_load_dwordx4 {vr(P+8,4)}, v{vPm}, {WS}, s{sP} offen sc1
""")
    for i in range(3):
        a(f"s_waitcnt vmcnt({2-i})")
        if i == 2: st(a, 6)
        if i == 2 and OPT['fm'] == 0: a(flag)
        for ct in range(2):
            smf(a, PACC+4*ct, P+4*i, vr(VOX+16*ct+8*i, 8) if i < 2 else vr(VOM+8*ct, 8))
    if OPT['fm'] == 1: a(flag)
    a(f"""s_nop 6
v_pk_add_f32 {vr(PACC,2)}, {vr(PACC,2)}, {vr(PACC+2,2)}
v_pk_add_f32 {vr(PACC+4,2)}, {vr(PACC+4,2)}, {vr(PACC+6,2)}
v_cmp_u_f32 vcc, v{PACC}, v{PACC+1}
s_cbranch_vccnz {Lr2}
{La2}:
ds_write2_b32 v{vRW}, v{PACC}, v{PACC+1} offset0:0 offset1:16
v_add_u32 v{vT}, 2048, v{vRW}
ds_write2_b32 v{vT}, v{PACC+4}, v{PACC+5} offset0:0 offset1:16""")
    if OPT['fm'] == 2: a(flag)
    a("s_waitcnt lgkmcnt(0)\ns_barrier")
    if OPT['fm'] == 3: a(flag)
    def c():
        a(f"{Lr2}:\ns_sub_u32 s{sBUD}, s{sBUD}, 1\ns_cbranch_scc1 {Lr2}x")
        if STAMP: a("s_add_u32 s83, s83, 1")
        zero(a, (PACC, 8))
        a(f"s_branch {Lp}\n{Lr2}x:\ns_mov_b32 s{sBUD}, 0\ns_branch {La2}")
    cold.append(c)
    st(a, 7)
    if role == 'f':
        R = BSTG[0]
        a(f"""ds_read2st64_b64 {vr(R,4)}, v{vRR} offset0:0 offset1:1
ds_read2st64_b64 {vr(R+4,4)}, v{vRR} offset0:2 offset1:3
s_waitcnt lgkmcnt(1)
v_pk_add_f32 {vr(R,2)}, {vr(R,2)}, {vr(R+2,2)}
s_waitcnt lgkmcnt(0)
v_pk_add_f32 {vr(R+4,2)}, {vr(R+4,2)}, {vr(R+6,2)}
v_pk_add_f32 {vr(R,2)}, {vr(R,2)}, {vr(R+4,2)}
v_cvt_pk_bf16_f32 v{R}, v{R}, v{R+1}
buffer_store_dword v{R}, v{vMP}, {WS}, s{sMn} offen {SC}
buffer_store_dword v{vPoi}, v{vMP}, {WS}, s{sMc} offen {SC}""")
    st(a, 8)
    a(f"""s_add_u32 s{sS_}, s{sS_}, 1
s_xor_b32 s{sMc}, s{sMc}, 8192
s_xor_b32 s{sMn}, s{sMn}, 8192
s_xor_b32 s{sP}, s{sP}, 16384
s_add_u32 s{sVO}, s{sVO}, {0 if SAME else 28*16384}
s_add_u32 s{sVO2}, s{sVO2}, {0 if SAME else 28*16384}
s_mov_b32 s{sVMp}, s{sVM}
s_add_u32 s{sVM}, s{sVM}, {28*4096}
s_add_u32 s{sMA}, s{sMA}, 8192
""")
    st_acc(a, range(9))
    flag_wait(a, vFR, sFM, 0xffff)
    a(f"v_add_u32 v{vStep}, 1, v{vStep}\ns_cmp_lt_u32 s{sS_}, 63\ns_cbranch_scc1 {Ltop}")
    sv = globals()['STAMP']; globals()['STAMP'] = False
    zero(a, (VACC, 32))
    mem_poll(a, cold, [], None)
    globals()['STAMP'] = sv
    vomem_gemm(a, w, mall() + vmst(sVMp) + sig, [])
    for x in vmst(sVM): a(x)
    a(f"v_mov_b32 v{vStep}, 65\ns_waitcnt vmcnt(0)\n{flag}")
    a("s_branch Lrec_done")
    for c in cold: c()

def loop_PF(a):
    Ll, Lw, Lc, Lgo, Lgo2 = (a.lab(x) for x in ("Lpf", "Lpfw", "Lpfc", "Lpfg", "Lpfg2"))
    Lpub = a.lab("Lpub")
    a(f"""s_sub_u32 s{sT0}, s{sCU}, 30
s_lshl_b32 s{sT0}, s{sT0}, 2
s_add_u32 s{sT0}, s{sT0}, s{sW}          ; pw 0..7
s_cmp_eq_u32 s{sT0}, 0
s_cbranch_scc1 {Lpub}0
s_cmp_eq_u32 s{sT0}, 1
s_cbranch_scc1 {Lpub}1
s_cmp_lt_u32 s{sT0}, 7
s_cbranch_scc1 Lend
s_mov_b32 s{sVO}, {VOOP+16384}
s_mov_b32 s{sVO2}, {28*16384}
s_mov_b32 s{sT1}, 32768
s_cmp_eq_u32 s{sT0}, 7
s_cselect_b32 s{sVO}, {XREC}, s{sVO}
s_cselect_b32 s{sVO2}, 28672, s{sVO2}
s_cselect_b32 s{sT1}, 16384, s{sT1}        ; stride between 128-line groups
s_cselect_b32 s{sT2}, 0, s{sT0}
s_lshl_b32 s{sT2}, s{sT2}, 16
s_add_u32 s{sVO}, s{sVO}, s{sT2}
v_lshlrev_b32 v21, 7, v1
v_add_u32 v22, 8192, v21
v_add_u32 v23, s{sT1}, v21
v_add_u32 v24, s{sT1}, v22
; extra coverage: hh=2,3 (2KB of every 4KB) of the ct=0 block: (lane>>4)*4096 + 2048 + (lane&15)*128 - 16384
v_lshlrev_b32 v32, 12, v40
v_lshl_add_u32 v32, v41, 7, v32
v_add_u32 v32, 2048, v32
s_cmp_eq_u32 s{sT0}, 7
s_cselect_b32 s{sT2}, {OOB}, 0
v_add_u32 v32, s{sT2}, v32
v_add_u32 v33, 32768, v32
s_sub_u32 s{sVO}, s{sVO}, 16384
v_add_u32 v21, 16384, v21
v_add_u32 v22, 16384, v22
v_add_u32 v23, 16384, v23
v_add_u32 v24, 16384, v24
s_mov_b32 s{sCN}, {CNT}
{Ll}:
; wait until recurrence step >= seg - LEAD
s_cmp_lt_u32 s{sS_}, {OPT['lead']+1}
s_cbranch_scc1 {Lgo}
s_sub_u32 s{sT0}, s{sS_}, {OPT['lead']}
{Lw}:
buffer_load_dword v25, v{vZ}, {WS}, s{sFM} offen sc1
s_waitcnt vmcnt(0)
v_cmp_gt_u32 vcc, s{sT0}, v25
s_cbranch_vccz {Lgo}
s_sleep 2
s_sub_u32 s{sBUD}, s{sBUD}, 1
s_cbranch_scc0 {Lw}
s_mov_b32 s{sBUD}, 0
{Lgo}:
s_and_b32 s{sT0}, s{sS_}, 3
s_cbranch_scc1 {Lgo2}
{Lc}:
buffer_load_dword v25, v{vZ}, {WS}, s{sCN} offen sc1
s_waitcnt vmcnt(0)
v_cmp_gt_u32 vcc, 16, v25
s_cbranch_vccz {Lc}x
s_sleep 4
s_sub_u32 s{sBUD}, s{sBUD}, 1
s_cbranch_scc0 {Lc}
s_mov_b32 s{sBUD}, 0
{Lc}x:
s_add_u32 s{sCN}, s{sCN}, 128
{Lgo2}:
buffer_load_dword v26, v21, {WS}, s{sVO} offen
buffer_load_dword v27, v22, {WS}, s{sVO} offen
buffer_load_dword v28, v23, {WS}, s{sVO} offen
buffer_load_dword v29, v24, {WS}, s{sVO} offen
""" + (f"""buffer_load_dword v30, v32, {WS}, s{sVO} offen
buffer_load_dword v31, v33, {WS}, s{sVO} offen
""" if OPT['pfx'] else "") + f"""s_add_u32 s{sVO}, s{sVO}, s{sVO2}
s_add_u32 s{sS_}, s{sS_}, 1
s_cmp_lt_u32 s{sS_}, 63
s_cbranch_scc1 {Ll}
s_branch Lend""")
    for i, (mask, soff, dst, first, last, d) in enumerate((("0x00ffffffffffffff", sFM, VPROG, 2, 65, 1), ("0xffff", sFP, PROG, 1, 63, 0))):
        L = f"{Lpub}{i}"
        a(f"""{L}:
v_lshlrev_b32 v21, 2, v1
v_mov_b32 v24, {OOB}
v_cmp_eq_u32 vcc, 0, v1
s_nop 1
v_cndmask_b32 v24, v24, v{vZ}, vcc
s_mov_b32 s{sT1}, {dst}
s_mov_b32 s{sS_}, {first}
s_mov_b32 exec_lo, {int(mask, 16) & 0xffffffff}
s_mov_b32 exec_hi, {int(mask, 16) >> 32}
{L}p:
buffer_load_dword v22, v21, {WS}, s{soff} offen sc1
s_waitcnt vmcnt(0)
v_cmp_gt_u32 vcc, s{sS_}, v22
s_cbranch_vccz {L}g
s_sleep 1
s_sub_u32 s{sBUD}, s{sBUD}, 1
s_cbranch_scc0 {L}p
s_mov_b32 s{sBUD}, 0
{L}g:
s_sub_u32 s{sT2}, s{sS_}, {d}
v_mov_b32 v23, s{sT2}
buffer_atomic_umax v23, v24, {WS}, s{sT1} offen
s_add_u32 s{sS_}, s{sS_}, 1
s_cmp_le_u32 s{sS_}, {last}
s_cbranch_scc1 {L}p
s_branch Lend""")

def team(a, SCs, modewait=None):
    roles = ("Ax", "Af", "B0", "B1", "B2", "B3")
    L = {(k, i): a.lab("Lrole") for k in roles for i in range(len(SCs))}
    LBs, LPF = a.lab("LB"), a.lab("LPF")
    a(f"s_cmp_ge_u32 s{sCU}, 30\ns_cbranch_scc1 {LPF}")
    a(f"s_cmp_ge_u32 s{sCU}, 16\ns_cbranch_scc1 {LBs}")
    def pick(tab):
        if modewait: modewait(a)
        a("s_barrier"); a(PRE)
        trace_a(a, f"s_lshl_b32 s98, s{sCU}, 3", 0x8004)
        for i in range(len(SCs)):
            Lnx = a.lab("Lnx")
            if len(SCs) > 1 and i == 0: a(f"s_cmp_eq_u32 s41, 1\ns_cbranch_scc0 {Lnx}")
            for w, k in tab[:-1]: a(f"s_cmp_eq_u32 s{sW}, {w}\ns_cbranch_scc1 {L[(k, i)]}")
            a(f"s_branch {L[(tab[-1][1], i)]}\n{Lnx}:")
    setup_A(a); pick([(3, "Af"), (0, "Ax")])
    a(f"{LBs}:")
    setup_B(a); pick([(1, "B1"), (2, "B2"), (3, "B3"), (0, "B0")])
    a(f"{LPF}:")
    loop_PF(a)
    for i, SC in enumerate(SCs):
        for k in roles:
            a(f".p2align 6\n{L[(k, i)]}:")
            loop_A(a, k[1], SC) if k[0] == 'A' else loop_B(a, int(k[1]), SC)

if __name__ == "__main__":
    import sys
    a = Asm()
    PRE = 's_memrealtime s[42:43]\ns_memtime s[46:47]\ns_waitcnt lgkmcnt(0)\ns_mov_b32 s70, s46'
    for x in sys.argv:
        if '=' in x: OPT[x.split('=')[0]] = int(x.split('=')[1])
    STAMP = 'stamp' in sys.argv; ABS = 'abs' in sys.argv; SAME = 'same' in sys.argv
    if 'warm' in sys.argv: a("; @launch kernel=warm_kernel grid=(11264,1,1) block=(256,1,1) lds=0")
    a("; @launch kernel=rec_kernel grid=(256,1,1) block=(256,1,1) lds=147456")
    a('.amdgcn_target "amdgcn-amd-amdhsa--gfx950"\n.text')
    kernel_begin(a, "rec_kernel")
    a("""s_cmp_ge_u32 s2, 256
s_cbranch_scc1 Lend
s_load_dwordx2 s[4:5], s[0:1], 96
s_load_dwordx2 s[6:7], s[0:1], 104
s_getreg_b32 s3, hwreg(HW_REG_XCC_ID)
s_and_b32 s3, s3, 15
s_waitcnt lgkmcnt(0)""")
    srd(a, 12, 4, 256); srd(a, 8, 6, 0x10000000)
    a(f"""s_cmp_lg_u32 s3, 0
s_cbranch_scc1 Lend
s_memrealtime s[40:41]
v_mov_b32 v1, 1
v_mov_b32 v2, 0
v_cmp_eq_u32 vcc, 0, v0
s_and_saveexec_b64 s[36:37], vcc
s_cbranch_execz Lskip
buffer_atomic_add v1, v2, s[12:15], 0 offen sc0
s_waitcnt vmcnt(0)
ds_write_b32 v2, v1
s_waitcnt lgkmcnt(0)
Lskip:
s_mov_b64 exec, s[36:37]
s_barrier
ds_read_b32 v1, v2
s_waitcnt lgkmcnt(0)
v_readfirstlane_b32 s{sCU}, v1
s_barrier
s_cmp_ge_u32 s{sCU}, 32
s_cbranch_scc1 Lend
""")
    setup(a)
    for i in range(13): a(f"s_mov_b32 s{72+i}, 0")
    team(a, ["sc1" if 'sc1' in sys.argv else ""])
    a(f"""Lrec_done:
s_memrealtime s[44:45]
s_memtime s[48:49]
s_waitcnt lgkmcnt(0)
s_lshl_b32 s36, s{sCU}, 2
s_add_u32 s36, s36, s{sW}
s_lshl_b32 s36, s36, 6
s_add_u32 s36, s36, 0x3480000
""" + "\n".join(f"v_mov_b32 v4, s{72+i}\nbuffer_store_dword v4, v{vZ}, {WS}, s36 offen offset:{4*i}" for i in range(13)) + f"""
v_mov_b32 v4, s{sBUD}
buffer_store_dword v4, v{vZ}, {WS}, s36 offen offset:60
s_cmp_lg_u32 s{sW}, 0
s_cbranch_scc1 Lend
s_cmp_lg_u32 s{sCU}, 16
s_cbranch_scc1 Lend
s_sub_u32 s44, s44, s42
s_sub_u32 s42, s42, s40
s_sub_u32 s48, s48, s46
v_mov_b32 v4, s42
v_mov_b32 v5, s44
v_mov_b32 v6, s48
v_mov_b32 v7, s{sBUD}
v_mov_b32 v3, 16
buffer_store_dwordx4 v[4:7], v3, s[12:15], 0 offen
Lend:
s_endpgm""")
    kernel_desc(a, "rec_kernel", 512, accum=256)
    kernel_begin(a, "warm_kernel")
    a("s_load_dwordx2 s[6:7], s[0:1], 104\ns_waitcnt lgkmcnt(0)")
    srd(a, 8, 6, 0x2C00000)
    a("""s_lshl_b32 s3, s2, 12
v_lshlrev_b32 v1, 4, v0
buffer_load_dwordx4 v[4:7], v1, s[8:11], s3 offen
s_waitcnt vmcnt(0)
buffer_store_dwordx4 v[4:7], v1, s[8:11], s3 offen
s_endpgm""")
    kernel_desc(a, "warm_kernel", 16)
    open(sys.argv[1], "w").write(a.text())
```

```python
import sys
from asmlib import *
from layout import *
import rec2, bulk, p0, asmlib
K2_LDS = 147456
def modewait(a, tmo=20000):
    Lp, Lg = a.lab("Lmw"), a.lab("Lmg")
    a(f"""s_mov_b32 s40, {tmo}
v_mov_b32 v40, 0
{Lp}:
buffer_load_dword v42, v40, s[12:15], 0 offen offset:4 sc1
s_waitcnt vmcnt(0)
v_readfirstlane_b32 s41, v42
s_cmp_lg_u32 s41, 0
s_cbranch_scc1 {Lg}
s_sleep 1
s_sub_u32 s40, s40, 1
s_cbranch_scc0 {Lp}
v_mov_b32 v42, 2
v_mov_b32 v43, 0
buffer_atomic_cmpswap v[42:43], v40, s[12:15], 0 offen offset:4
s_waitcnt vmcnt(0)
s_mov_b32 s40, {tmo}
s_branch {Lp}
{Lg}:""")
NAME = "recurrent_scan__memory_aug_recurrent_mem_tr__swiglu_ffn__prompt_kernel"
def gen_fused(a, force_slow=False):
    rec2.FUSED = True
    kernel_begin(a, NAME)
    a("""s_cmp_ge_u32 s2, 256
s_cbranch_scc0 Lstart
s_endpgm
Lstart:
s_load_dwordx2 s[4:5], s[0:1], 96
s_load_dwordx2 s[6:7], s[0:1], 104
s_getreg_b32 s3, hwreg(HW_REG_XCC_ID)
s_and_b32 s3, s3, 15
s_waitcnt lgkmcnt(0)""")
    srd(a, 12, 4, 256); srd(a, 8, 6, 0x10000000)
    tmo = 50 if force_slow else 20000
    def ticket(a, sfx):
        a(f"""v_mov_b32 v1, 1
v_mov_b32 v2, 0
v_mov_b32 v3, {K2_LDS-16}
v_cmp_eq_u32 vcc, 0, v0
s_and_saveexec_b64 s[36:37], vcc
s_cbranch_execz Lskip{sfx}
buffer_atomic_add v1, v2, s[12:15], 0 offen sc0
s_waitcnt vmcnt(0)
ds_write_b32 v3, v1
v_cmp_eq_u32 vcc, 31, v1
s_cbranch_vccz Lnolast{sfx}
v_mov_b32 v4, 1
v_mov_b32 v5, 0
buffer_atomic_cmpswap v[4:5], v2, s[12:15], 0 offen offset:4
Lnolast{sfx}:
s_waitcnt lgkmcnt(0)
Lskip{sfx}:
s_mov_b64 exec, s[36:37]
s_barrier
ds_read_b32 v1, v3
s_waitcnt lgkmcnt(0)
v_readfirstlane_b32 s{rec2.sCU}, v1
s_barrier""")
    a(f"s_mov_b32 s{rec2.sCU}, 99\ns_cmp_eq_u32 s3, {99 if force_slow else 0}\ns_cbranch_scc0 Lp0")
    ticket(a, "a")
    a("Lp0:")
    p0.gen_p0(a)
    a(f"""s_cmp_lt_u32 s{rec2.sCU}, 32
s_cbranch_scc1 Lteam
s_cmp_lt_u32 s{rec2.sCU}, 99
s_cbranch_scc1 Lbulk""")
    modewait(a, tmo)
    a("s_cmp_eq_u32 s41, 1\ns_cbranch_scc1 Lbulk")
    ticket(a, "b")
    a(f"""s_cmp_lt_u32 s{rec2.sCU}, 32
s_cbranch_scc1 Lteam
Lbulk:""")
    bulk.bulk_setup(a)
    bulk.dispatcher(a, "Lend2")
    a("Lend2:\ns_endpgm\nLteam:")
    rec2.setup(a)
    rec2.trace_a(a, f"s_lshl_b32 s98, s{rec2.sCU}, 3", 0x8000)
    rec2.team(a, ["", "sc1"], lambda a: modewait(a, tmo))
    a("Lrec_done:")
    rec2.trace_a(a, f"s_lshl_b32 s98, s{rec2.sCU}, 2", 0x9200)
    a("Lend:\ns_endpgm")
    kernel_desc(a, NAME, 512, accum=256)

HEAD = open('recurrent_scan__memory_aug_recurrent_mem_tr__swiglu_ffn__prompt.s.ref').read().split("; Override launch")[0]
if __name__ == "__main__":
    a = Asm()
    a(HEAD.rstrip())
    a(f"; @launch grid=(256,1,1) block=(256,1,1) lds={K2_LDS}")
    a('.amdgcn_target "amdgcn-amd-amdhsa--gfx950"\n.text')
    for x in sys.argv:
        if '=' in x: rec2.OPT[x.split('=')[0]] = int(x.split('=')[1])
    asmlib.TRACE = 'trace' in sys.argv
    gen_fused(a, 'slow' in sys.argv)
    open(sys.argv[1], "w").write(a.text())
```
